```python
import torch

def _softmax(x, axis=-1):
    return torch.softmax(x, dim=axis)
def _gelu(x):
    return torch.nn.functional.gelu(x, approximate="tanh")
def _silu(x):
    return torch.nn.functional.silu(x)
def _sigmoid(x):
    return torch.sigmoid(x)
def _layernorm(x, axis=-1, eps=1e-5):
    m = x.mean(dim=axis, keepdim=True)
    v = x.var(dim=axis, keepdim=True, unbiased=False)
    return (x - m) / torch.sqrt(v + eps)
def _scatter_add(tgt, idx, src, axis=0):
    return tgt.clone().index_add_(axis, idx, src)
def _segment_sum(src, seg, n):
    out = torch.zeros((n,) + src.shape[1:], dtype=src.dtype)
    return out.index_add_(0, seg, src)
def _pad(x, pw):
    flat = tuple(v for pair in reversed(pw) for v in pair)
    return torch.nn.functional.pad(x, flat)

kernel_name = 'parallel_sum__gqa_block_cached__dense_activation_squared_relu__decode'

def setup_inputs():

    _w = (lambda a: (lambda t: t.to(torch.bfloat16) if t.is_floating_point() else t)(torch.as_tensor(a)))
    def _A_setup():
        B, Sq, D = 2, 1, 1024
        Hq, Hkv, Sk, Dh = 32, 4, 32768, 128
        assert Hq % Hkv == 0, (Hq, Hkv)
        return {
            "x": _w((lambda *s: torch.randn(*s, dtype=torch.bfloat16) * 0.05)(B, Sq, D)),
            "k_cache": _w((lambda *s: torch.randn(*s, dtype=torch.bfloat16) * 3.2)(B, Hkv, Sk, Dh)),
            "v_cache": _w((lambda *s: torch.randn(*s, dtype=torch.bfloat16) * 3.2)(B, Hkv, Sk, Dh)),
            "wq": _w((lambda *s: torch.randn(*s, dtype=torch.bfloat16) * 3.2)(D, Hq * Dh) * (D ** -0.5)),
            "wo": _w((lambda *s: torch.randn(*s, dtype=torch.bfloat16) * 3.2)(Hq * Dh, D) * ((Hq * Dh) ** -0.5)),
        }
    _A_in = _A_setup()

    def _B_setup():
        B, S, D, F = 2, 1, 1024, 3584
        return {
            "x": _w((lambda *s: torch.randn(*s, dtype=torch.bfloat16) * 0.05)(B, S, D)),
            "w1": _w((lambda *s: torch.randn(*s, dtype=torch.bfloat16) * 0.05)(D, F)),
            "b1": _w((lambda *s: torch.randn(*s, dtype=torch.bfloat16) * 0.8)(F)),
            "w2": _w((lambda *s: torch.randn(*s, dtype=torch.bfloat16) * 0.05)(F, D)),
            "b2": _w((lambda *s: torch.randn(*s, dtype=torch.bfloat16) * 6.4)(D)),
        }
    _B_in = _B_setup()

    return {
        "A_x": _A_in["x"],
        "A_k_cache": _A_in["k_cache"],
        "A_v_cache": _A_in["v_cache"],
        "A_wq": _A_in["wq"],
        "A_wo": _A_in["wo"],
        "B_x": _B_in["x"],
        "B_w1": _B_in["w1"],
        "B_b1": _B_in["b1"],
        "B_w2": _B_in["w2"],
        "B_b2": _B_in["b2"],
    }

def reference(A_x, A_k_cache, A_v_cache, A_wq, A_wo, B_x, B_w1, B_b1, B_w2, B_b2):
    def _A_ref(x, k_cache, v_cache, wq, wo):
        B, Sq, D = x.shape
        Hq, Dh = 32, 128
        Hkv = k_cache.shape[1]
        rep = Hq // Hkv
        q = (lambda x, *d: x.permute(*d))((x @ wq).reshape(B, Sq, Hq, Dh), 0, 2, 1, 3)
        k = (lambda x, n, axis: torch.repeat_interleave(x, n, dim=axis))(k_cache, rep, axis=1)
        v = (lambda x, n, axis: torch.repeat_interleave(x, n, dim=axis))(v_cache, rep, axis=1)
        scores = torch.einsum("bhqd,bhkd->bhqk", q, k) * (Dh ** -0.5)
        p = _softmax(scores, axis=-1)
        o = torch.einsum("bhqk,bhkd->bhqd", p, v)
        return (lambda x, *d: x.permute(*d))(o, 0, 2, 1, 3).reshape(B, Sq, Hq * Dh) @ wo

    def _B_ref(x, w1, b1, w2, b2):
        h = torch.einsum("bsd,df->bsf", x, w1) + b1
        zero = torch.zeros_like(h)
        r = torch.where(h > zero, h, zero)
        h = r * r
        out = torch.einsum("bsf,fd->bsd", h, w2) + b2
        return out

    x = A_x
    xn = _layernorm(x, axis=-1)
    return x + _A_ref(xn, A_k_cache, A_v_cache, A_wq, A_wo) + _B_ref(xn, B_w1, B_b1, B_w2, B_b2)
```

```python
import re
TRANS = ("v_exp_f32","v_log_f32","v_rcp_f32","v_rsq_f32","v_sqrt_f32","v_sin_f32","v_cos_f32")
def regs(tok):
    tok = tok.strip()
    neg = tok.lstrip("-").strip("|")
    m = re.fullmatch(r"([vs])(\d+)", neg)
    if m: return {(m.group(1), int(m.group(2)))}
    m = re.fullmatch(r"([vs])\[(\d+):(\d+)\]", neg)
    if m: return {(m.group(1), i) for i in range(int(m.group(2)), int(m.group(3))+1)}
    if neg == "vcc": return {("s",106),("s",107)}
    if neg == "exec": return {("s",126),("s",127)}
    return set()
class Ins:
    def __init__(s, text):
        s.text = text
        t = text.split(";")[0].strip()
        parts = t.split(None, 1)
        s.mn = parts[0]
        rest = parts[1] if len(parts) > 1 else ""
        ops = [o.strip() for o in rest.split(",")]
        if ops:
            last = ops[-1].split()
            if last:
                ops[-1] = last[0]; s.mods = " ".join(last[1:])
            else: s.mods = ""
        s.ops = ops
        mn = s.mn
        s.kind = "other"; s.w = set(); s.r = set(); s.c = set(); s.ab=set(); s.dpp=False; s.perm=False
        s.trans=False; s.st=set(); s.ws=1
        R = [regs(o) for o in ops]
        allr = lambda l: set().union(*l) if l else set()
        if mn.startswith("v_mfma"):
            s.kind="mfma"; s.w=R[0]; s.ab=R[1]|R[2]; s.c=R[3]; s.r=s.ab|s.c
        elif mn.startswith("v_"):
            s.kind="valu"; s.w=set(R[0]); s.r=allr(R[1:])
            if "permlane" in mn and "swap" in mn:
                s.perm=True; s.w=R[0]|R[1]; s.r=R[0]|R[1]
            if "row_" in s.mods or "quad_perm" in s.mods or mn.endswith("_dpp"): s.dpp=True; s.r|=R[0]
            if mn.startswith(("v_fmac","v_writelane","v_pk_fmac")): s.r|=R[0]
            if mn.startswith(TRANS): s.trans=True
            if mn.startswith(("v_add_co","v_sub_co","v_addc_co")): s.w|=R[1]
        elif mn.startswith(("buffer_","global_")):
            s.kind="vmem"
            if "load" in mn: s.w=R[0]; s.r=allr(R[1:])
            else:
                s.r=allr(R)
                if "x4" in mn or "x3" in mn: s.st=R[0]
        elif mn.startswith("ds_"):
            s.kind="ds"
            if "read" in mn: s.w=R[0]; s.r=allr(R[1:])
            else: s.r=allr(R)
        elif mn.startswith("s_"):
            s.kind="salu"
            if mn=="s_nop": s.ws=int(ops[0],0)+1
            elif mn.startswith(("s_cmp","s_cbranch","s_branch","s_waitcnt","s_barrier","s_endpgm","s_setprio","s_sleep")): s.r=allr(R)
            else:
                s.w=set(R[0]) if R else set(); s.r=allr(R[1:])
                if "saveexec" in mn: s.w|={("s",126),("s",127)}
def V(x): return {r for r in x if r[0]=="v"}
def S(x): return {r for r in x if r[0]=="s"}
EX={("s",126),("s",127)}
def need(p, c):
    n=0
    if p.kind=="valu":
        wv=V(p.w); wsg=S(p.w)
        if c is None:
            n=max(n,2 if wv else 0, 5 if wsg else 0)
        else:
            if wv & c.r:
                if c.kind=="mfma" or c.dpp or c.perm: n=max(n,2)
                if c.mn.startswith(("v_readlane","v_readfirstlane")): n=max(n,1)
                if p.trans: n=max(n,1)
                if "op_sel" in p.mods or "sdwa" in p.mn: n=max(n,1)
            if wsg & c.r:
                if c.kind=="valu": n=max(n,4 if c.mn.startswith(("v_readlane","v_writelane")) else 2)
                if c.kind=="vmem": n=max(n,5)
                if c.kind=="salu": n=max(n,1)
            if wsg & EX:
                if c.dpp: n=max(n,5)
                if c.kind=="mfma" or c.perm or c.mn.startswith(("v_readlane","v_readfirstlane","v_writelane")): n=max(n,4)
    if p.kind=="salu" and (p.w & EX):
        if c is None: n=max(n,5)
        elif c.dpp: n=max(n,5)
        elif c.kind=="mfma" or c.perm: n=max(n,4)
    if p.kind=="mfma":
        if c is None: n=max(n,8)
        else:
            if c.kind=="mfma":
                if p.w & c.ab: n=max(n,8)
                if p.w & c.c and p.w!=c.c: n=max(n,6)
                if p.w & c.w and p.w!=c.c: n=max(n,6)
            elif (p.w & c.r) or (p.w & c.w): n=max(n,8)
            if c.kind=="valu" and (p.c & c.w): n=max(n,3)
    if p.kind=="vmem" and p.st:
        if c is None: n=max(n,2)
        elif p.st & c.w: n=max(n,2)
    return n
def hazard_pass(lines):
    out=[]; hist=[]
    for ln in lines:
        t=ln.split(";")[0].strip()
        if not t or t.endswith(":") or t.startswith("."):
            out.append(ln); continue
        ins=Ins(t)
        isbr = ins.mn.startswith(("s_cbranch","s_branch"))
        d=0; req=0
        for p in reversed(hist):
            k=need(p, ins)
            if isbr: k=max(k, need(p,None)-1)
            req=max(req,k-d)
            d+=p.ws
            if d>12: break
        if req>0:
            nop=Ins(f"s_nop {req-1}"); out.append(f"    s_nop {req-1}"); hist.append(nop)
        out.append("    "+ln.strip()); hist.append(ins)
        hist=hist[-14:]
    return out
```

```python
import sys, struct, os
sys.path.insert(0, os.path.dirname(__file__))
from asmlib import hazard_pass
NAME="parallel_sum__gqa_block_cached__dense_activation_squared_relu__decode"
def f2u(x): return struct.unpack("<I", struct.pack("<f", x))[0]

def gen(opt):
    DIAG=opt.get("diag",0); NT=opt.get("nt","")
    NTW=opt.get("ntw",NT)
    L=[]; E=L.append
    def vr(a,n=4): return f"v[{a}:{a+n-1}]"
    def sr(a,n=4): return f"s[{a}:{a+n-1}]"
    QP=0; OPR=0x100000; ML=0x200000; FP=0x300000; WSZ=0x400000; DG=0x400000
    WP=0; QB=8192; MXB=QB+8*272; LSB=MXB+256; OPB=11008
    SA=81*16; OPW=4*SA
    LDS=OPB+8*OPW
    SX,SK,SV,SW1,SW2,SWS,SDB,SO,SB1,SB2=32,36,40,44,48,52,56,60,64,68
    sW,sKB,sT,sT2,sST,sPL,sPH,sM2,sM8=72,73,74,75,76,77,78,80,82
    sOPs,sMLs,sFin,sCnt,sSC,sL2E,sHI,sFE=84,85,86,87,88,89,90,91
    sB=92; sHKV=93; sS=94; sT3=95
    stamp_i=[0]
    def stamp():
        if DIAG:
            i=stamp_i[0]; stamp_i[0]+=1
            E(f"s_memrealtime s[96:97]")
            E(f"s_waitcnt lgkmcnt(0)")
            E(f"v_writelane_b32 v31, s96, {i}")
    vK,vV,vW1,vW2,vN,vG,vM=1,2,3,4,5,6,7
    T=8; XF=24; KR=32; V0=160; X=192; D=224
    E("s_cmp_ge_u32 s2, 0x100")
    E("s_cbranch_scc1 L_END")
    E("s_load_dwordx8 s[4:11], s[0:1], 0")
    E("s_load_dwordx8 s[12:19], s[0:1], 32")
    E("s_load_dwordx8 s[20:27], s[0:1], 64")
    E("s_load_dwordx2 s[28:29], s[0:1], 96")
    E("v_lshrrev_b32 v1, 6, v0")
    E("v_and_b32 v0, 63, v0")
    E(f"v_readfirstlane_b32 s{sW}, v1")
    E(f"v_and_b32 v{vN}, 15, v0")
    E(f"v_lshrrev_b32 v{vG}, 4, v0")
    if DIAG: E("v_mov_b32 v31, 0")
    E("v_and_b32 v10, 1, v0")
    E("v_lshlrev_b32 v10, 11, v10")
    E("v_lshrrev_b32 v11, 1, v0")
    E("v_lshl_add_u32 v28, v11, 4, v10")
    E(f"v_lshl_add_u32 v29, v{vG}, 4, v10")
    E(f"s_and_b32 s{sT}, s2, 3")
    E(f"s_lshl_b32 s{sT}, s{sT}, 8")
    E(f"s_lshl_b32 s{sT2}, s{sW}, 5")
    E(f"s_add_u32 s{sT}, s{sT}, s{sT2}")
    E(f"s_lshl_b32 s{sT3}, s{sT}, 1")
    E("s_cmp_lt_u32 s2, 0x80")
    E(f"s_movk_i32 s{sST}, 0x1c00")
    E(f"s_cselect_b32 s{sST}, 0x2000, s{sST}")
    E(f"s_mul_i32 s{sT}, s{sT}, s{sST}")
    E(f"s_lshr_b32 s{sT2}, s2, 2")
    E(f"s_and_b32 s{sT2}, s{sT2}, 31")
    E(f"s_lshl_b32 s{sCnt}, s{sT2}, 8")
    E(f"s_add_u32 s{sT}, s{sT}, s{sCnt}")
    E(f"s_lshl_b32 s{sCnt}, s{sST}, 3")
    E(f"v_lshlrev_b32 v{vW1}, 4, v{vN}")
    E(f"v_mad_u32_u24 v{vW1}, v{vG}, s{sCnt}, v{vW1}")
    E("s_waitcnt lgkmcnt(0)")
    stamp()
    def srd(r,lo,nrec):
        E(f"s_mov_b32 s{r}, s{lo}"); E(f"s_mov_b32 s{r+1}, s{lo+1}")
        if nrec is not None: E(f"s_mov_b32 s{r+2}, {hex(nrec)}")
        E(f"s_mov_b32 s{r+3}, 0x20000")
    srd(SX,4,4096)
    for i in range(4): E(f"buffer_load_dwordx4 {vr(T+4*i)}, v28, {sr(SX)}, 0 offen offset:{512*i}")
    E(f"buffer_load_dwordx4 {vr(XF)}, v29, {sr(SX)}, s{sT3} offen")
    E("s_cmp_lt_u32 s2, 0x80")
    E(f"s_cselect_b32 s{SW1}, s10, s16")
    E(f"s_cselect_b32 s{SW1+1}, s11, s17")
    E(f"s_mov_b32 s{SW1+2}, 0x700000")
    E(f"s_cselect_b32 s{SW1+2}, 0x800000, s{SW1+2}")
    E(f"s_cmp_lt_u32 s2, {128+112}")
    E(f"s_cselect_b32 s{SW1+2}, s{SW1+2}, 0")
    E(f"s_mov_b32 s{SW1+3}, 0x20000")
    for i in range(8):
        E(f"buffer_load_dwordx4 {vr(X+4*i)}, v{vW1}, {sr(SW1)}, s{sT} offen {NTW}")
        if i<7: E(f"s_add_u32 s{sT}, s{sT}, s{sST}")
    srd(SK,6,0x4000000); srd(SV,8,0x4000000); srd(SWS,28,WSZ+(0x100000 if DIAG else 0))
    E(f"s_and_b32 s{sT}, s2, 7")
    E(f"s_lshl_b32 s{sKB}, s{sT}, 23")
    E(f"s_lshr_b32 s{sS}, s2, 3")
    E(f"s_lshl_b32 s{sT2}, s{sS}, 18")
    E(f"s_add_u32 s{sKB}, s{sKB}, s{sT2}")
    E(f"s_lshl_b32 s{sT2}, s{sW}, 15")
    E(f"s_add_u32 s{sKB}, s{sKB}, s{sT2}")
    E(f"v_and_b32 v28, 3, v{vN}")
    E(f"v_lshlrev_b32 v28, 10, v28")
    E(f"v_lshrrev_b32 v29, 2, v{vN}")
    E(f"v_lshl_add_u32 v28, v29, 8, v28")
    E(f"v_lshl_add_u32 v{vK}, v{vG}, 4, v28")
    E(f"v_lshlrev_b32 v{vV}, 4, v0")
    def kload(t0,t1):
        for t in range(t0,t1):
            E(f"s_add_u32 s{sT}, s{sKB}, {4096*t}")
            for kk in range(4):
                E(f"buffer_load_dwordx4 {vr(KR+16*t+4*kk)}, v{vK}, {sr(SK)}, s{sT} offen offset:{64*kk} {NT}")
    def vload(u,base):
        for h in range(2):
            E(f"s_add_u32 s{sT}, s{sKB}, {8192*u+4096*h}")
            for i in range(4):
                E(f"buffer_load_dwordx4 {vr(base+16*h+4*i)}, v{vV}, {sr(SV)}, s{sT} offen offset:{1024*i} {NT}")
    E(f"s_and_b32 s{sT2}, s2, 7")
    E(f"s_lshl_b32 s{sOPs}, s{sT2}, 17")
    E(f"s_lshl_b32 s{sT3}, s{sS}, 9")
    E(f"s_add_u32 s{sOPs}, s{sOPs}, s{sT3}")
    E(f"s_add_u32 s{sOPs}, s{sOPs}, {hex(OPR)}")
    E(f"s_lshl_b32 s{sMLs}, s{sT2}, 11")
    E(f"s_lshl_b32 s{sT3}, s{sS}, 3")
    E(f"s_add_u32 s{sMLs}, s{sMLs}, s{sT3}")
    E(f"s_add_u32 s{sMLs}, s{sMLs}, {hex(ML)}")
    E(f"s_cmp_eq_u32 s{sW}, 7")
    E("s_cbranch_scc1 L_SVC_CLR")
    kload(0,2)
    E("s_branch L_STATS")
    E("L_SVC_CLR:")
    E("s_setprio 3")
    for i in range(4): E(f"v_mov_b32 v{KR+i}, -1")
    E("v_lshrrev_b32 v28, 5, v0")
    E("v_lshlrev_b32 v28, 14, v28")
    E("v_and_b32 v29, 31, v0")
    E("v_lshl_add_u32 v28, v29, 4, v28")
    for q in range(4):
        E(f"s_add_u32 s{sT}, s{sOPs}, {q*32768}")
        E(f"buffer_store_dwordx4 {vr(KR)}, v28, {sr(SWS)}, s{sT} offen sc1")
    E("v_and_b32 v29, 7, v0")
    E("v_lshlrev_b32 v29, 8, v29")
    E(f"buffer_store_dwordx2 {vr(KR,2)}, v29, {sr(SWS)}, s{sMLs} offen sc1")
    E(f"buffer_store_dwordx2 {vr(KR,2)}, v29, {sr(SWS)}, s{sMLs} offen sc1")
    E(f"s_lshl_b32 s{sT}, s2, 10")
    E(f"s_add_u32 s{sT}, s{sT}, {hex(FP)}")
    E(f"buffer_store_dwordx4 {vr(KR)}, v{vV}, {sr(SWS)}, s{sT} offen sc1")
    E(f"s_add_u32 s{sT}, s{sT}, 0x40000")
    E(f"buffer_store_dwordx4 {vr(KR)}, v{vV}, {sr(SWS)}, s{sT} offen sc1")
    E("L_STATS:")
    E(f"s_mov_b32 s{sPL}, 0x05040100"); E(f"s_mov_b32 s{sPH}, 0x07060302")
    E(f"s_mov_b32 s{sM2}, 0x00030003"); E(f"s_mov_b32 s{sM2+1}, 0x00030003")
    E(f"s_mov_b32 s{sM8}, 0x00ff00ff"); E(f"s_mov_b32 s{sM8+1}, 0x00ff00ff")
    E(f"s_mov_b32 s{sSC}, {hex(f2u(128**-0.5))}")
    E(f"s_mov_b32 s{sL2E}, {hex(f2u(1.4426950408889634))}")
    E(f"s_mov_b32 s{sHI}, 0xffff0000"); E(f"s_mov_b32 s{sFE}, 0xfffffffe")
    srd(SDB,26,256); srd(SO,24,4096); srd(SB1,18,7168); srd(SB2,22,2048)
    E(f"s_cmp_lt_u32 s2, 224")
    E(f"s_cselect_b32 s{SW2+2}, 0x700000, 0")
    E(f"s_cselect_b32 s{SB1+2}, 7168, 0")
    E(f"s_cmp_lt_u32 s{sW}, 4")
    E(f"s_cselect_b32 s{SW2}, s12, s20")
    E(f"s_cselect_b32 s{SW2+1}, s13, s21")
    E(f"s_cselect_b32 s{SW2+2}, 0x800000, s{SW2+2}")
    E(f"s_mov_b32 s{SW2+3}, 0x20000")
    E(f"v_lshlrev_b32 v{vW2}, 4, v{vN}")
    E(f"v_lshl_add_u32 v{vW2}, v{vG}, 12, v{vW2}")
    E("s_waitcnt vmcnt(17)")
    for i in range(16):
        E(f"v_lshlrev_b32 v{D+2*i}, 16, v{T+i}")
        E(f"v_and_b32 v{D+2*i+1}, s{sHI}, v{T+i}")
    def allred_parity(r,t):
        for k in (2,4,8):
            E(f"v_add_f32_dpp v{r}, v{r}, v{r} row_ror:{k} row_mask:0xf bank_mask:0xf")
        for sw in ("v_permlane16_swap_b32","v_permlane32_swap_b32"):
            E(f"v_mov_b32 v{t}, v{r}")
            E(f"{sw} v{r}, v{t}")
            E(f"v_add_f32 v{r}, v{r}, v{t}")
    def tree_sum(src,n,tmp):
        for a in range(4): E(f"v_add_f32 v{tmp+a}, v{src+a}, v{src+4+a}")
        for i in range(8,n): E(f"v_add_f32 v{tmp+(i&3)}, v{tmp+(i&3)}, v{src+i}")
        E(f"v_add_f32 v{tmp}, v{tmp}, v{tmp+1}"); E(f"v_add_f32 v{tmp+2}, v{tmp+2}, v{tmp+3}")
        E(f"v_add_f32 v{tmp}, v{tmp}, v{tmp+2}")
    tree_sum(D,32,T)
    allred_parity(T,T+1)
    E(f"v_mul_f32 v{T+4}, {hex(f2u(1/1024))}, v{T}")
    for i in range(32): E(f"v_sub_f32 v{D+i}, v{D+i}, v{T+4}")
    for a in range(4): E(f"v_mul_f32 v{T+a}, v{D+a}, v{D+a}")
    for i in range(4,32): E(f"v_fmac_f32 v{T+(i&3)}, v{D+i}, v{D+i}")
    E(f"v_add_f32 v{T}, v{T}, v{T+1}"); E(f"v_add_f32 v{T+2}, v{T+2}, v{T+3}"); E(f"v_add_f32 v{T}, v{T}, v{T+2}")
    allred_parity(T,T+1)
    E(f"v_mul_f32 v{T}, {hex(f2u(1/1024))}, v{T}")
    E(f"v_cvt_pk_bf16_f32 v{T+1}, v{T+4}, v{T}")
    E(f"v_lshlrev_b32 v{T+4}, 16, v{T+1}")
    E(f"v_and_b32 v{T}, s{sHI}, v{T+1}")
    E(f"v_add_f32 v{T}, {hex(f2u(1e-5))}, v{T}")
    E(f"v_cvt_pk_bf16_f32 v{T}, v{T}, v{T}")
    E(f"v_and_b32 v{T}, s{sHI}, v{T}")
    E(f"v_sqrt_f32 v{T}, v{T}")
    E(f"v_cvt_pk_bf16_f32 v{T}, v{T}, v{T}")
    E(f"v_and_b32 v{T}, s{sHI}, v{T}")
    E(f"v_rcp_f32 v{T+1}, v{T}")
    E("s_waitcnt vmcnt(16)")
    for i in range(4):
        E(f"v_lshlrev_b32 v{D+2*i}, 16, v{XF+i}")
        E(f"v_and_b32 v{D+2*i+1}, s{sHI}, v{XF+i}")
    for i in range(8): E(f"v_sub_f32 v{D+i}, v{D+i}, v{T+4}")
    for i in range(4): E(f"v_cvt_pk_bf16_f32 v{XF+i}, v{D+2*i}, v{D+2*i+1}")
    for i in range(4):
        E(f"v_lshlrev_b32 v{D+2*i}, 16, v{XF+i}")
        E(f"v_and_b32 v{D+2*i+1}, s{sHI}, v{XF+i}")
    for i in range(8): E(f"v_mul_f32 v{D+8+i}, v{D+i}, v{T+1}")
    for i in range(8): E(f"v_fma_f32 v{D+i}, -v{D+8+i}, v{T}, v{D+i}")
    for i in range(8): E(f"v_fmac_f32 v{D+8+i}, v{D+i}, v{T+1}")
    for i in range(4): E(f"v_cvt_pk_bf16_f32 v{XF+i}, v{D+8+2*i}, v{D+8+2*i+1}")
    stamp()
    def perms(R,e,dst):
        w=e>>1; sel=sPH if e&1 else sPL
        for u in range(4):
            E(f"v_perm_b32 v{dst+u}, v{R+4*(2*u+1)+w}, v{R+4*(2*u)+w}, s{sel}")
    def tile_mm(R, order, mm):
        for idx,e in enumerate(order):
            perms(R,e,T+4*(idx&3))
            if idx>0: mm(order[idx-1],T+4*((idx-1)&3))
        mm(order[-1],T+4*((len(order)-1)&3))
    E(f"v_lshlrev_b32 v30, 9, v{vN}")
    E(f"v_lshl_add_u32 v30, v{vG}, 7, v30")
    E(f"s_lshl_b32 s{sT}, s{sW}, 10")
    E(f"v_add_u32 v30, s{sT}, v30")
    E("s_waitcnt vmcnt(8)")
    stamp()
    tile_mm(X, list(range(8)), lambda e,a: E(f"v_mfma_f32_16x16x32_bf16 {vr(D+4*e)}, {vr(a)}, {vr(XF)}, 0"))
    def gemv_to_lds():
        E(f"s_mov_b64 exec, s[{sM2}:{sM2+1}]")
        for e in range(8): E(f"ds_write_b128 v30, {vr(D+4*e)} offset:{WP+16*e}")
        E("s_mov_b64 exec, -1")
        E("s_waitcnt lgkmcnt(0)")
    gemv_to_lds()
    E("s_barrier")
    stamp()
    E(f"s_cmp_eq_u32 s{sW}, 7")
    E("s_cbranch_scc1 L_SVC")
    kload(2,8); vload(0,V0); vload(1,X)
    stamp()
    E("s_barrier")
    E("s_branch L_QK")
    E("L_SVC:")
    for w in range(8): E(f"ds_read_b128 {vr(KR+4*w)}, v{vV} offset:{WP+1024*w}")
    E("s_waitcnt lgkmcnt(0)")
    for st in (16,8,4):
        for i in range(0,st,2): E(f"v_pk_add_f32 {vr(KR+i,2)}, {vr(KR+i,2)}, {vr(KR+st+i,2)}")
    E(f"s_lshl_b32 s{sT}, s2, 10")
    E(f"buffer_store_dwordx4 {vr(KR)}, v{vV}, {sr(SWS)}, s{sT} offen sc1")
    E(f"s_and_b32 s{sT}, s2, 63")
    E(f"s_lshl_b32 s{sT}, s{sT}, 2")
    E("v_mov_b32 v28, 1")
    E("v_mov_b32 v29, 0")
    E("v_lshlrev_b32 v30, 2, v0")
    E("s_waitcnt vmcnt(0)")
    stamp()
    E("s_mov_b64 exec, 1")
    E(f"buffer_atomic_add v28, v29, {sr(SDB)}, s{sT} offen sc1")
    E("s_mov_b64 exec, -1")
    E(f"s_mov_b32 s{sCnt}, 0")
    E("L_POLL0:")
    E(f"buffer_load_dword v28, v30, {sr(SDB)}, 0 offen sc1")
    E(f"s_add_u32 s{sCnt}, s{sCnt}, 1")
    E(f"s_cmp_gt_u32 s{sCnt}, 0x40000")
    E("s_waitcnt vmcnt(0)")
    E("v_cmp_ne_u32 vcc, 4, v28")
    E("s_cbranch_scc1 L_POLL0_DONE")
    E("s_cbranch_vccnz L_POLL0")
    E("L_POLL0_DONE:")
    stamp()
    E("v_lshrrev_b32 v28, 5, v0")
    E("v_and_b32 v29, 31, v0")
    E("v_lshlrev_b32 v30, 12, v28")
    E("v_lshl_add_u32 v30, v29, 4, v30")
    E(f"s_and_b32 s{sT}, s2, 3")
    E(f"s_lshl_b32 s{sT}, s{sT}, 15")
    E(f"s_lshr_b32 s{sT2}, s2, 2")
    E(f"s_and_b32 s{sT2}, s{sT2}, 1")
    E(f"s_lshl_b32 s{sT2}, s{sT2}, 9")
    E(f"s_add_u32 s{sT}, s{sT}, s{sT2}")
    for hp in range(4):
        for ks in range(4):
            E(f"buffer_load_dwordx4 {vr(KR+16*hp+4*ks)}, v30, {sr(SWS)}, s{sT} offen offset:{1024*ks} sc1")
        if hp<3: E(f"s_add_u32 s{sT}, s{sT}, 0x2000")
    E("v_mul_u32_u24 v28, 272, v28")
    E("v_lshrrev_b32 v30, 3, v29")
    E("v_lshl_add_u32 v28, v30, 6, v28")
    E("v_and_b32 v30, 7, v29")
    E("v_lshl_add_u32 v28, v30, 1, v28")
    for hp in range(4):
        b=KR+16*hp
        E(f"s_waitcnt vmcnt({12-4*hp})")
        for i in (0,2): E(f"v_pk_add_f32 {vr(b+i,2)}, {vr(b+i,2)}, {vr(b+4+i,2)}")
        for i in (0,2): E(f"v_pk_add_f32 {vr(b+8+i,2)}, {vr(b+8+i,2)}, {vr(b+12+i,2)}")
        for i in (0,2): E(f"v_pk_add_f32 {vr(b+i,2)}, {vr(b+i,2)}, {vr(b+8+i,2)}")
        E(f"v_cvt_pk_bf16_f32 v{b}, v{b}, v{b+1}")
        E(f"v_cvt_pk_bf16_f32 v{b+1}, v{b+2}, v{b+3}")
        o=QB+hp*544
        E(f"ds_write_b16 v28, v{b} offset:{o}")
        E(f"ds_write_b16_d16_hi v28, v{b} offset:{o+16}")
        E(f"ds_write_b16 v28, v{b+1} offset:{o+32}")
        E(f"ds_write_b16_d16_hi v28, v{b+1} offset:{o+48}")
    E("s_waitcnt lgkmcnt(0)")
    stamp()
    E("s_barrier")
    E("s_setprio 0")
    kload(0,8); vload(0,V0); vload(1,X)
    E("L_QK:")
    if DIAG: stamp_i[0]=7
    stamp()
    E(f"v_and_b32 v28, 7, v0")
    E("v_mul_u32_u24 v28, 272, v28")
    E(f"v_lshl_add_u32 v28, v{vG}, 4, v28")
    for kk in range(4): E(f"ds_read_b128 {vr(T+4*kk)}, v28 offset:{QB+64*kk}")
    E("s_waitcnt lgkmcnt(0)")
    waits=[40,40,32,24]
    for p in range(4):
        E(f"s_waitcnt vmcnt({waits[p]})")
        for kk in range(4):
            for t in (2*p,2*p+1):
                c="0" if kk==0 else vr(D+4*t)
                E(f"v_mfma_f32_16x16x32_bf16 {vr(D+4*t)}, {vr(KR+16*t+4*kk)}, {vr(T+4*kk)}, {c}")
        if p==0: vload(2,KR)
    stamp()
    HX=144; B1R=152; XFN=156; B2F=157; ACC=128
    E(f"v_lshrrev_b32 v28, 1, v{vN}")
    E("v_and_b32 v28, 3, v28")
    E("v_lshlrev_b32 v28, 10, v28")
    E("v_and_b32 v29, 1, v0")
    E("v_lshl_add_u32 v28, v29, 9, v28")
    E(f"v_lshl_add_u32 v28, v{vG}, 5, v28")
    E(f"s_lshl_b32 s{sT}, s{sS}, 12")
    E(f"s_and_b32 s{sT2}, s{sW}, 3")
    E(f"s_lshl_b32 s{sT3}, s{sT2}, 7")
    E(f"s_add_u32 s{sT}, s{sT}, s{sT3}")
    E(f"s_add_u32 s{sT}, s{sT}, 0x20000")
    E(f"buffer_load_dwordx4 {vr(HX)}, v28, {sr(SWS)}, s{sT} offen sc1")
    E(f"buffer_load_dwordx4 {vr(HX+4)}, v28, {sr(SWS)}, s{sT} offen offset:16 sc1")
    E(f"s_lshl_b32 s{sT}, s{sS}, 8")
    E(f"s_lshl_b32 s{sT3}, s{sT2}, 6")
    E(f"s_add_u32 s{sT}, s{sT}, s{sT3}")
    E(f"v_lshlrev_b32 v29, 2, v{vG}")
    for r in range(4): E(f"buffer_load_dword v{B1R+r}, v29, {sr(SB1)}, s{sT} offen offset:{16*r}")
    E("v_lshrrev_b32 v28, 1, v0")
    E("v_and_b32 v28, 3, v28")
    E("v_lshlrev_b32 v28, 4, v28")
    E("v_and_b32 v29, 1, v0")
    E("v_lshl_add_u32 v158, v29, 1, v28")
    E(f"s_and_b32 s{sT}, s2, 7")
    E(f"s_lshl_b32 s{sT}, s{sT}, 8")
    E(f"s_lshr_b32 s{sT3}, s{sS}, 2")
    E(f"s_and_b32 s{sT3}, s{sT3}, 3")
    E(f"s_lshl_b32 s{sT3}, s{sT3}, 6")
    E(f"s_add_u32 s{sT}, s{sT}, s{sT3}")
    E(f"s_and_b32 s{sT3}, s{sS}, 3")
    E(f"s_lshl_b32 s{sT3}, s{sT3}, 2")
    E(f"s_add_u32 s{sT}, s{sT}, s{sT3}")
    E(f"s_lshr_b32 s{sT3}, s{sS}, 4")
    E(f"s_lshl_b32 s{sT3}, s{sT3}, 11")
    E(f"s_add_u32 s{sFin}, s{sT}, s{sT3}")
    E(f"buffer_load_ushort v{XFN}, v158, {sr(SX)}, s{sFin} offen")
    E(f"buffer_load_ushort v{B2F}, v158, {sr(SB2)}, s{sT} offen")
    vload(3,KR+32)
    E(f"s_lshl_b32 s{sT}, s{sS}, 18")
    E(f"s_lshl_b32 s{sT3}, s{sT2}, 16")
    E(f"s_add_u32 s{sT}, s{sT}, s{sT3}")
    E(f"s_and_b32 s{sT3}, s2, 7")
    E(f"s_lshl_b32 s{sT3}, s{sT3}, 8")
    E(f"s_add_u32 s{sT}, s{sT}, s{sT3}")
    WT=KR+64
    for j in range(8):
        off=(8*(j&3)+(j>>2))*2048
        E(f"s_add_u32 s{sT3}, s{sT}, {off&~4095}")
        E(f"buffer_load_dwordx4 {vr(WT+4*j)}, v{vW2}, {sr(SW2)}, s{sT3} offen offset:{off&4095} {NTW}")
    stamp()
    for rnd in range(2):
        for i in range(16): E(f"v_cvt_pk_bf16_f32 v{T+i}, v{D+2*i}, v{D+2*i+1}")
        for i in range(16):
            E(f"v_lshlrev_b32 v{D+2*i}, 16, v{T+i}")
            E(f"v_and_b32 v{D+2*i+1}, s{sHI}, v{T+i}")
        if rnd==0:
            for i in range(32): E(f"v_mul_f32 v{D+i}, s{sSC}, v{D+i}")
    for a in range(4): E(f"v_max3_f32 v{T+a}, v{D+a}, v{D+4+a}, v{D+8+a}")
    for i in range(12,28,8):
        for a in range(4): E(f"v_max3_f32 v{T+a}, v{T+a}, v{D+i+a}, v{D+i+4+a}")
    for a in range(4): E(f"v_max_f32 v{T+a}, v{T+a}, v{D+28+a}")
    E(f"v_max3_f32 v{T}, v{T}, v{T+1}, v{T+2}"); E(f"v_max_f32 v{T}, v{T}, v{T+3}")
    def allred_g(r,t,op):
        for sw in ("v_permlane16_swap_b32","v_permlane32_swap_b32"):
            E(f"v_mov_b32 v{t}, v{r}")
            E(f"{sw} v{r}, v{t}")
            E(f"{op} v{r}, v{r}, v{t}")
    allred_g(T,T+1,"v_max_f32")
    E("v_and_b32 v28, 7, v0")
    E("v_lshlrev_b32 v28, 5, v28")
    E(f"s_lshl_b32 s{sT}, s{sW}, 2")
    E(f"v_add_u32 v29, s{sT}, v28")
    E("s_mov_b64 exec, 0xff")
    E(f"ds_write_b32 v29, v{T} offset:{MXB}")
    E("s_mov_b64 exec, -1")
    E("s_waitcnt lgkmcnt(0)")
    E("s_barrier")
    stamp()
    E(f"ds_read_b128 {vr(T)}, v28 offset:{MXB}")
    E(f"ds_read_b128 {vr(T+4)}, v28 offset:{MXB+16}")
    E("s_waitcnt lgkmcnt(0)")
    E(f"v_max3_f32 v{T}, v{T}, v{T+1}, v{T+2}"); E(f"v_max3_f32 v{T+4}, v{T+4}, v{T+5}, v{T+6}")
    E(f"v_max3_f32 v{T}, v{T}, v{T+3}, v{T+7}"); E(f"v_max_f32 v{T}, v{T}, v{T+4}")
    E(f"v_mul_f32 v{vM}, s{sL2E}, v{T}")
    for i in range(32): E(f"v_fma_f32 v{D+i}, v{D+i}, s{sL2E}, -v{vM}")
    for i in range(32): E(f"v_exp_f32 v{D+i}, v{D+i}")
    tree_sum(D,32,T)
    allred_g(T,T+1,"v_add_f32")
    E("s_mov_b64 exec, 0xff")
    E(f"ds_write_b32 v29, v{T} offset:{LSB}")
    E("s_mov_b64 exec, -1")
    for u in range(4):
        b=D+8*u
        for i in range(4): E(f"v_cvt_pk_bf16_f32 v{b+i}, v{b+2*i}, v{b+2*i+1}")
        for i in range(4): E(f"v_cndmask_b32 v{b+4+i}, v{b+i}, 0, s[{sM8}:{sM8+1}]")
        for i in range(4): E(f"v_cndmask_b32 v{b+i}, 0, v{b+i}, s[{sM8}:{sM8+1}]")
    stamp()
    vb=[V0,X,KR,KR+32]; vw=[40,32,24,8]
    order=[0,2,4,6,1,3,5,7]
    for u in range(4):
        if u==3:
            E("s_waitcnt vmcnt(16)")
            for k in (2,4):
                for i in range(8): E(f"v_add_f32_dpp v{HX+i}, v{HX+i}, v{HX+i} row_ror:{k} row_mask:0xf bank_mask:0xf")
            for i in range(4): E(f"v_cvt_pk_bf16_f32 v{T+i}, v{HX+i}, v{HX+4+i}")
            for i in range(4):
                E(f"v_lshlrev_b32 v{HX+i}, 16, v{T+i}"); E(f"v_and_b32 v{HX+4+i}, s{sHI}, v{T+i}")
                E(f"v_lshlrev_b32 v{T+4+i}, 16, v{B1R+i}"); E(f"v_and_b32 v{T+8+i}, s{sHI}, v{B1R+i}")
            for i in range(8): E(f"v_add_f32 v{HX+i}, v{HX+i}, v{T+4+i}")
            for i in range(4): E(f"v_cvt_pk_bf16_f32 v{T+i}, v{HX+i}, v{HX+4+i}")
            for i in range(4):
                E(f"v_lshlrev_b32 v{HX+i}, 16, v{T+i}"); E(f"v_and_b32 v{HX+4+i}, s{sHI}, v{T+i}")
            for i in range(8): E(f"v_cmp_gt_f32 vcc, v{HX+i}, 0") or E(f"v_cndmask_b32 v{HX+i}, 0, v{HX+i}, vcc")
            for i in range(8): E(f"v_mul_f32 v{HX+i}, v{HX+i}, v{HX+i}")
            for i in range(4): E(f"v_cvt_pk_bf16_f32 v{XF+i}, v{HX+2*i}, v{HX+2*i+1}")
            E(f"v_mul_u32_u24 v28, 20, v{vG}")
            E(f"v_add_lshl_u32 v28, v28, v{vN}, 4")
            E(f"s_mul_i32 s{sT}, s{sW}, {OPW}")
            E(f"v_add_u32 v28, s{sT}, v28")
            stamp()
        E(f"s_waitcnt vmcnt({vw[u]})")
        if u==3: stamp()
        def mm(e,a,u=u):
            c="0" if (u==0 and e%2==0) else vr(ACC+4*(e>>1))
            E(f"v_mfma_f32_16x16x32_bf16 {vr(ACC+4*(e>>1))}, {vr(a)}, {vr(D+8*u+4*(e&1))}, {c}")
        tile_mm(vb[u],order,mm)
    for q in range(4): E(f"ds_write_b128 v28, {vr(ACC+4*q)} offset:{OPB+q*SA}")
    E("s_waitcnt lgkmcnt(0)")
    E("s_barrier")
    stamp()
    E(f"s_cmp_ge_u32 s{sW}, 4")
    E("s_cbranch_scc1 L_W2")
    E("v_and_b32 v28, 7, v0")
    E("v_lshrrev_b32 v29, 1, v28")
    E("v_mul_u32_u24 v29, 81, v29")
    E("v_and_b32 v28, 1, v0")
    E("v_lshl_add_u32 v29, v28, 3, v29")
    E("v_bfe_u32 v28, v0, 3, 2")
    E("v_mul_u32_u24 v28, 20, v28")
    E("v_add_u32 v29, v28, v29")
    E("v_lshrrev_b32 v28, 5, v0")
    E("v_add_u32 v29, v28, v29")
    E(f"s_lshl_b32 s{sT}, s{sW}, 1")
    E(f"v_add_lshl_u32 v29, v29, s{sT}, 4")
    for w in range(8): E(f"ds_read_b128 {vr(V0+4*w)}, v29 offset:{OPB+OPW*w}")
    E("v_lshlrev_b32 v28, 14, v28")
    E("v_and_b32 v29, 31, v0")
    E("v_lshl_add_u32 v28, v29, 4, v28")
    E(f"s_lshl_b32 s{sT}, s{sW}, 15")
    E(f"s_add_u32 s{sT}, s{sT}, s{sOPs}")
    E("s_waitcnt lgkmcnt(0)")
    for st in (16,8,4):
        for i in range(0,st,2): E(f"v_pk_add_f32 {vr(V0+i,2)}, {vr(V0+i,2)}, {vr(V0+st+i,2)}")
    E(f"v_min_u32 v{V0}, s{sFE}, v{V0}")
    E(f"buffer_store_dwordx4 {vr(V0)}, v28, {sr(SWS)}, s{sT} offen sc1")
    stamp()
    G=V0+4; MLR=V0+36
    E("v_and_b32 v28, 1, v0")
    E(f"v_lshrrev_b32 v29, 1, v{vN}")
    E("v_lshlrev_b32 v26, 19, v28")
    E("v_lshl_add_u32 v26, v29, 11, v26")
    E(f"v_lshl_add_u32 v26, v{vG}, 5, v26")
    E("v_lshlrev_b32 v27, 13, v28")
    E("v_lshl_add_u32 v27, v29, 5, v27")
    E(f"s_lshl_b32 s{sT}, s{sS}, 14")
    E(f"s_lshl_b32 s{sT2}, s{sW}, 7")
    E(f"s_add_u32 s{sT}, s{sT}, s{sT2}")
    E(f"s_add_u32 s{sT}, s{sT}, {hex(OPR)}")
    E(f"s_lshl_b32 s{sT2}, s{sS}, 8")
    E(f"s_add_u32 s{sT2}, s{sT2}, {hex(ML)}")
    def hop1_loads():
        E(f"buffer_load_dwordx4 {vr(MLR)}, v27, {sr(SWS)}, s{sT2} offen sc1")
        E(f"buffer_load_dwordx4 {vr(MLR+4)}, v27, {sr(SWS)}, s{sT2} offen offset:16 sc1")
        for i in range(4):
            for h in range(2):
                E(f"buffer_load_dwordx4 {vr(G+8*i+4*h)}, v26, {sr(SWS)}, s{sT} offen offset:{512*i+16*h} sc1")
    hop1_loads()
    E("s_waitcnt vmcnt(11)")
    stamp()
    for e in range(8): perms(WT,e,KR+4*e)
    E(f"s_mov_b32 s{sCnt}, 0")
    E("L_POLL1:")
    E("s_waitcnt vmcnt(0)")
    E(f"v_max3_u32 v28, v{MLR}, v{MLR+2}, v{MLR+4}")
    E(f"v_max3_u32 v29, v{MLR+6}, v{G}, v{G+4}")
    E(f"v_max3_u32 v28, v28, v{G+8}, v{G+12}")
    E(f"v_max3_u32 v29, v29, v{G+16}, v{G+20}")
    E(f"v_max3_u32 v28, v28, v{G+24}, v{G+28}")
    E("v_max_u32 v28, v28, v29")
    E("v_cmp_eq_u32 vcc, -1, v28")
    E("s_cbranch_vccz L_POLL1_DONE")
    E(f"s_add_u32 s{sCnt}, s{sCnt}, 1")
    E(f"s_cmp_gt_u32 s{sCnt}, 0x40000")
    E("s_cbranch_scc1 L_POLL1_DONE")
    hop1_loads()
    E("s_branch L_POLL1")
    E("L_POLL1_DONE:")
    stamp()
    E(f"v_max3_f32 v28, v{MLR}, v{MLR+2}, v{MLR+4}")
    E(f"v_max_f32 v28, v28, v{MLR+6}")
    for k in (2,4,8): E(f"v_max_f32_dpp v28, v28, v28 row_ror:{k} row_mask:0xf bank_mask:0xf")
    for i in range(4): E(f"v_sub_f32 v{MLR+2*i}, v{MLR+2*i}, v28")
    for i in range(4): E(f"v_exp_f32 v{MLR+2*i}, v{MLR+2*i}")
    E(f"v_mul_f32 v29, v{MLR}, v{MLR+1}")
    for i in range(1,4): E(f"v_fmac_f32 v29, v{MLR+2*i}, v{MLR+2*i+1}")
    for j in range(8): E(f"v_mul_f32 v{G+j}, v{G+j}, v{MLR}")
    for i in range(1,4):
        for j in range(8): E(f"v_fmac_f32 v{G+j}, v{G+8*i+j}, v{MLR+2*i}")
    for k in (2,4,8):
        E(f"v_add_f32_dpp v29, v29, v29 row_ror:{k} row_mask:0xf bank_mask:0xf")
        for j in range(8): E(f"v_add_f32_dpp v{G+j}, v{G+j}, v{G+j} row_ror:{k} row_mask:0xf bank_mask:0xf")
    E("v_rcp_f32 v29, v29")
    for j in range(8): E(f"v_mul_f32 v{G+j}, v{G+j}, v29")
    for i in range(4): E(f"v_cvt_pk_bf16_f32 v{XF+i}, v{G+2*i}, v{G+2*i+1}")
    E("s_branch L_TAILMM")
    E("L_W2:")
    E(f"s_cmp_lg_u32 s{sW}, 4")
    E("s_cbranch_scc1 L_W2B")
    E("v_and_b32 v28, 7, v0")
    E("v_lshlrev_b32 v29, 5, v28")
    E(f"ds_read_b128 {vr(T)}, v29 offset:{LSB}")
    E(f"ds_read_b128 {vr(T+4)}, v29 offset:{LSB+16}")
    E("v_lshlrev_b32 v28, 8, v28")
    E(f"v_min_u32 v{T+8}, s{sFE}, v{vM}")
    E("s_waitcnt lgkmcnt(0)")
    E(f"v_pk_add_f32 {vr(T,2)}, {vr(T,2)}, {vr(T+2,2)}")
    E(f"v_pk_add_f32 {vr(T+4,2)}, {vr(T+4,2)}, {vr(T+6,2)}")
    E(f"v_pk_add_f32 {vr(T,2)}, {vr(T,2)}, {vr(T+4,2)}")
    E(f"v_add_f32 v{T+9}, v{T}, v{T+1}")
    E("s_mov_b64 exec, 0xff")
    E(f"buffer_store_dwordx2 {vr(T+8,2)}, v28, {sr(SWS)}, s{sMLs} offen sc1")
    E("s_mov_b64 exec, -1")
    E("s_waitcnt vmcnt(1)")
    E("s_branch L_W2C")
    E("L_W2B:")
    E("s_waitcnt vmcnt(0)")
    E("L_W2C:")
    for e in range(8): perms(WT,e,KR+4*e)
    E("L_TAILMM:")
    for e in range(8): E(f"v_mfma_f32_16x16x32_bf16 {vr(D+4*e)}, {vr(KR+4*e)}, {vr(XF)}, 0")
    E(f"v_lshlrev_b32 v30, 9, v{vN}")
    E(f"v_lshl_add_u32 v30, v{vG}, 7, v30")
    E(f"s_lshl_b32 s{sT}, s{sW}, 10")
    E(f"v_add_u32 v30, s{sT}, v30")
    gemv_to_lds()
    if DIAG: stamp_i[0]=19
    stamp()
    E("s_barrier")
    E(f"s_cmp_eq_u32 s{sW}, 5")
    E("s_cbranch_scc1 L_FIN")
    E(f"s_and_b32 s{sT}, s{sW}, 3")
    E(f"s_cmp_lg_u32 s{sT}, 0")
    E("s_cbranch_scc1 L_DONE")
    E(f"s_lshl_b32 s{sT}, s{sW}, 10")
    E(f"v_add_u32 v28, s{sT}, v{vV}")
    for w in range(4): E(f"ds_read_b128 {vr(V0+4*w)}, v28 offset:{WP+1024*w}")
    E(f"s_lshl_b32 s{sT}, s{sW}, 16")
    E(f"s_lshl_b32 s{sT2}, s2, 10")
    E(f"s_add_u32 s{sT}, s{sT}, s{sT2}")
    E(f"s_add_u32 s{sT}, s{sT}, {hex(FP)}")
    E("s_waitcnt lgkmcnt(0)")
    for st in (8,4):
        for i in range(0,st,2): E(f"v_pk_add_f32 {vr(V0+i,2)}, {vr(V0+i,2)}, {vr(V0+st+i,2)}")
    E(f"v_min_u32 v{V0}, s{sFE}, v{V0}")
    E(f"buffer_store_dwordx4 {vr(V0)}, v{vV}, {sr(SWS)}, s{sT} offen sc1")
    stamp()
    E("s_branch L_DONE")
    E("L_FIN:")
    E("v_lshrrev_b32 v28, 5, v0")
    E("v_lshlrev_b32 v28, 18, v28")
    E("v_bfe_u32 v29, v0, 1, 4")
    E("v_lshl_add_u32 v28, v29, 13, v28")
    E("v_and_b32 v29, 1, v0")
    E("v_lshl_add_u32 v28, v29, 4, v28")
    E(f"s_and_b32 s{sT}, s2, 7")
    E(f"s_lshl_b32 s{sT}, s{sT}, 10")
    E(f"s_lshl_b32 s{sT2}, s{sS}, 5")
    E(f"s_add_u32 s{sT}, s{sT}, s{sT2}")
    E(f"s_add_u32 s{sT}, s{sT}, {hex(FP)}")
    E(f"s_add_u32 s{sT2}, s{sT}, 0x20000")
    E(f"s_mov_b32 s{sCnt}, 0")
    E(f"v_lshlrev_b32 v{XFN}, 16, v{XFN}")
    E(f"v_lshlrev_b32 v{B2F}, 16, v{B2F}")
    E("s_mov_b32 s98, 0xcccccccc"); E("s_mov_b32 s99, 0xcccccccc")
    E("s_mov_b32 s100, 0xf0f0f0f0"); E("s_mov_b32 s101, 0xf0f0f0f0")
    E("L_POLL2:")
    E(f"buffer_load_dwordx4 {vr(V0)}, v28, {sr(SWS)}, s{sT} offen sc1")
    E(f"buffer_load_dwordx4 {vr(V0+4)}, v28, {sr(SWS)}, s{sT2} offen sc1")
    E(f"s_add_u32 s{sCnt}, s{sCnt}, 1")
    E(f"s_cmp_gt_u32 s{sCnt}, 0x40000")
    E("s_waitcnt vmcnt(0)")
    E(f"v_max_u32 v29, v{V0}, v{V0+4}")
    E("v_cmp_eq_u32 vcc, -1, v29")
    E("s_cbranch_scc1 L_POLL2_DONE")
    E("s_cbranch_vccnz L_POLL2")
    E("L_POLL2_DONE:")
    if DIAG: stamp_i[0]=21
    stamp()
    for i in (0,2): E(f"v_pk_add_f32 {vr(V0+i,2)}, {vr(V0+i,2)}, {vr(V0+4+i,2)}")
    for k in (2,4,8):
        for i in range(4): E(f"v_add_f32_dpp v{V0+i}, v{V0+i}, v{V0+i} row_ror:{k} row_mask:0xf bank_mask:0xf")
    E(f"v_cndmask_b32 v{V0}, v{V0}, v{V0+1}, s[98:99]")
    E(f"v_cndmask_b32 v{V0+2}, v{V0+2}, v{V0+3}, s[98:99]")
    E(f"v_cndmask_b32 v{V0}, v{V0}, v{V0+2}, s[100:101]")
    E(f"v_mov_b32 v{V0+1}, v{V0}")
    E(f"v_permlane16_swap_b32 v{V0}, v{V0+1}")
    E(f"v_add_f32 v{V0}, v{V0}, v{V0+1}")
    E(f"v_mov_b32 v{V0+1}, v{V0}")
    E(f"v_permlane32_swap_b32 v{V0}, v{V0+1}")
    E(f"v_cvt_pk_bf16_f32 v{V0+2}, v{V0}, v{V0+1}")
    E(f"v_lshlrev_b32 v{V0}, 16, v{V0+2}")
    E(f"v_and_b32 v{V0+1}, s{sHI}, v{V0+2}")
    E(f"v_add_f32 v{V0}, v{XFN}, v{V0}")
    E(f"v_add_f32 v{V0+1}, v{V0+1}, v{B2F}")
    E(f"v_cvt_pk_bf16_f32 v{V0+2}, v{V0}, v{V0+1}")
    E(f"v_lshlrev_b32 v{V0}, 16, v{V0+2}")
    E(f"v_and_b32 v{V0+1}, s{sHI}, v{V0+2}")
    E(f"v_add_f32 v{V0}, v{V0}, v{V0+1}")
    E(f"v_cvt_pk_bf16_f32 v{V0}, v{V0}, v{V0}")
    E("s_mov_b64 exec, 0xff")
    E(f"buffer_store_short v{V0}, v158, {sr(SO)}, s{sFin} offen")
    E("s_mov_b64 exec, -1")
    E("L_DONE:")
    if DIAG:
        stamp_i[0]=22
        E("s_waitcnt vmcnt(0)")
        stamp()
        E(f"s_lshl_b32 s{sT}, s2, 3")
        E(f"s_add_u32 s{sT}, s{sT}, s{sW}")
        E(f"s_lshl_b32 s{sT}, s{sT}, 8")
        E(f"s_add_u32 s{sT}, s{sT}, {hex(DG)}")
        E("v_lshlrev_b32 v28, 2, v0")
        E(f"buffer_store_dword v31, v28, {sr(SWS)}, s{sT} offen")
    E("L_END:")
    body=hazard_pass(L)
    ref=open(f"cdna_kernels/{NAME}.s.ref").read().split("\n")
    hdr=[l for l in ref if l.startswith(";") and "@launch" not in l]
    out=hdr+[f"; @launch grid=(256,1,1) block=(512,1,1) lds={LDS}",
      '.amdgcn_target "amdgcn-amd-amdhsa--gfx950"',".text",f".globl {NAME}_kernel",".p2align 8",
      f".type {NAME}_kernel,@function",f"{NAME}_kernel:"]+body+["s_endpgm",'.section .rodata,"a"',".p2align 6",
      f".amdhsa_kernel {NAME}_kernel","  .amdhsa_next_free_vgpr 256","  .amdhsa_next_free_sgpr 102",
      "  .amdhsa_accum_offset 256","  .amdhsa_group_segment_fixed_size 0","  .amdhsa_kernarg_size 104",
      "  .amdhsa_user_sgpr_count 2","  .amdhsa_user_sgpr_kernarg_segment_ptr 1",
      "  .amdhsa_system_sgpr_workgroup_id_x 1",".end_amdhsa_kernel",""]
    return "\n".join(out)

if __name__=="__main__":
    opt={}
    outp=f"cdna_kernels/{NAME}.s"
    for a in sys.argv[1:]:
        k,v=a.split("=",1)
        if k=="out": outp=v
        else:
            try: opt[k]=int(v,0)
            except: opt[k]=v
    open(outp,"w").write(gen(opt))
```

```python
import sys, struct, os
sys.path.insert(0, os.path.dirname(__file__))
from asmlib import hazard_pass
NAME="parallel_sum__gqa_block_cached__dense_activation_squared_relu__decode"
def f2u(x): return struct.unpack("<I", struct.pack("<f", x))[0]

def gen(opt):
    DIAG=opt.get("diag",0); NT=opt.get("nt","")
    NTW=opt.get("ntw",NT)
    L=[]; E=L.append
    def vr(a,n=4): return f"v[{a}:{a+n-1}]"
    def sr(a,n=4): return f"s[{a}:{a+n-1}]"
    QP=0; OPR=0x100000; ML=0x200000; FP=0x300000; WSZ=0x400000; DG=0x400000; FL=0x80000; EP=0x90000
    WP=0; QB=8192; MXB=QB+8*272; LSB=MXB+256; OPB=11008
    SA=81*16; OPW=4*SA
    LDS=OPB+8*OPW
    SX,SK,SV,SW1,SW2,SWS,SDB,SO,SB1,SB2=32,36,40,44,48,52,56,60,64,68
    sW,sKB,sT,sT2,sST,sPL,sPH,sM2,sM8=72,73,74,75,76,77,78,80,82
    sOPs,sMLs,sFin,sCnt,sSC,sL2E,sHI,sFE=84,85,86,87,88,89,90,91
    sTag=92; sEp=93; sS=94; sT3=95
    stamp_i=[0]
    def stamp():
        if DIAG:
            i=stamp_i[0]; stamp_i[0]+=1
            E(f"s_memrealtime s[96:97]")
            E(f"s_waitcnt lgkmcnt(0)")
            E(f"v_writelane_b32 v31, s96, {i}")
    vK,vV,vW1,vW2,vN,vG,vM=1,2,3,4,5,6,7
    T=8; XF=24; KR=32; V0=160; X=192; D=224
    E("s_cmp_ge_u32 s2, 0x100")
    E("s_cbranch_scc1 L_END")
    E("s_load_dwordx8 s[4:11], s[0:1], 0")
    E("s_load_dwordx8 s[12:19], s[0:1], 32")
    E("s_load_dwordx8 s[20:27], s[0:1], 64")
    E("s_load_dwordx2 s[28:29], s[0:1], 96")
    E("v_lshrrev_b32 v1, 6, v0")
    E("v_and_b32 v0, 63, v0")
    E(f"v_readfirstlane_b32 s{sW}, v1")
    E(f"v_and_b32 v{vN}, 15, v0")
    E(f"v_lshrrev_b32 v{vG}, 4, v0")
    if DIAG: E("v_mov_b32 v31, 0")
    E("v_and_b32 v10, 1, v0")
    E("v_lshlrev_b32 v10, 11, v10")
    E("v_lshrrev_b32 v11, 1, v0")
    E("v_lshl_add_u32 v28, v11, 4, v10")
    E(f"v_lshl_add_u32 v29, v{vG}, 4, v10")
    E(f"s_and_b32 s{sT}, s2, 3")
    E(f"s_lshl_b32 s{sT}, s{sT}, 8")
    E(f"s_lshl_b32 s{sT2}, s{sW}, 5")
    E(f"s_add_u32 s{sT}, s{sT}, s{sT2}")
    E(f"s_lshl_b32 s{sT3}, s{sT}, 1")
    E("s_cmp_lt_u32 s2, 0x80")
    E(f"s_movk_i32 s{sST}, 0x1c00")
    E(f"s_cselect_b32 s{sST}, 0x2000, s{sST}")
    E(f"s_mul_i32 s{sT}, s{sT}, s{sST}")
    E(f"s_lshr_b32 s{sT2}, s2, 2")
    E(f"s_and_b32 s{sT2}, s{sT2}, 31")
    E(f"s_lshl_b32 s{sCnt}, s{sT2}, 8")
    E(f"s_add_u32 s{sT}, s{sT}, s{sCnt}")
    E(f"s_lshl_b32 s{sCnt}, s{sST}, 3")
    E(f"v_lshlrev_b32 v{vW1}, 4, v{vN}")
    E(f"v_mad_u32_u24 v{vW1}, v{vG}, s{sCnt}, v{vW1}")
    E("s_waitcnt lgkmcnt(0)")
    stamp()
    def srd(r,lo,nrec):
        E(f"s_mov_b32 s{r}, s{lo}"); E(f"s_mov_b32 s{r+1}, s{lo+1}")
        if nrec is not None: E(f"s_mov_b32 s{r+2}, {hex(nrec)}")
        E(f"s_mov_b32 s{r+3}, 0x20000")
    srd(SX,4,4096)
    for i in range(4): E(f"buffer_load_dwordx4 {vr(T+4*i)}, v28, {sr(SX)}, 0 offen offset:{512*i}")
    E(f"buffer_load_dwordx4 {vr(XF)}, v29, {sr(SX)}, s{sT3} offen")
    E("s_cmp_lt_u32 s2, 0x80")
    E(f"s_cselect_b32 s{SW1}, s10, s16")
    E(f"s_cselect_b32 s{SW1+1}, s11, s17")
    E(f"s_mov_b32 s{SW1+2}, 0x700000")
    E(f"s_cselect_b32 s{SW1+2}, 0x800000, s{SW1+2}")
    E(f"s_cmp_lt_u32 s2, {128+112}")
    E(f"s_cselect_b32 s{SW1+2}, s{SW1+2}, 0")
    E(f"s_mov_b32 s{SW1+3}, 0x20000")
    for i in range(8):
        E(f"buffer_load_dwordx4 {vr(X+4*i)}, v{vW1}, {sr(SW1)}, s{sT} offen {NTW}")
        if i<7: E(f"s_add_u32 s{sT}, s{sT}, s{sST}")
    srd(SK,6,0x4000000); srd(SV,8,0x4000000); srd(SWS,28,WSZ+(0x100000 if DIAG else 0))
    E(f"s_and_b32 s{sT}, s2, 7")
    E(f"s_lshl_b32 s{sKB}, s{sT}, 23")
    E(f"s_lshr_b32 s{sS}, s2, 3")
    E(f"s_lshl_b32 s{sT2}, s{sS}, 18")
    E(f"s_add_u32 s{sKB}, s{sKB}, s{sT2}")
    E(f"s_lshl_b32 s{sT2}, s{sW}, 15")
    E(f"s_add_u32 s{sKB}, s{sKB}, s{sT2}")
    E(f"v_and_b32 v28, 3, v{vN}")
    E(f"v_lshlrev_b32 v28, 10, v28")
    E(f"v_lshrrev_b32 v29, 2, v{vN}")
    E(f"v_lshl_add_u32 v28, v29, 8, v28")
    E(f"v_lshl_add_u32 v{vK}, v{vG}, 4, v28")
    E(f"v_lshlrev_b32 v{vV}, 4, v0")
    def kload(t0,t1):
        for t in range(t0,t1):
            E(f"s_add_u32 s{sT}, s{sKB}, {4096*t}")
            for kk in range(4):
                E(f"buffer_load_dwordx4 {vr(KR+16*t+4*kk)}, v{vK}, {sr(SK)}, s{sT} offen offset:{64*kk} {NT}")
    def vload(u,base):
        for h in range(2):
            E(f"s_add_u32 s{sT}, s{sKB}, {8192*u+4096*h}")
            for i in range(4):
                E(f"buffer_load_dwordx4 {vr(base+16*h+4*i)}, v{vV}, {sr(SV)}, s{sT} offen offset:{1024*i} {NT}")
    E(f"s_and_b32 s{sT2}, s2, 7")
    E(f"s_lshl_b32 s{sOPs}, s{sT2}, 17")
    E(f"s_lshl_b32 s{sT3}, s{sS}, 9")
    E(f"s_add_u32 s{sOPs}, s{sOPs}, s{sT3}")
    E(f"s_add_u32 s{sOPs}, s{sOPs}, {hex(OPR)}")
    E(f"s_lshl_b32 s{sMLs}, s{sT2}, 11")
    E(f"s_lshl_b32 s{sT3}, s{sS}, 3")
    E(f"s_add_u32 s{sMLs}, s{sMLs}, s{sT3}")
    E(f"s_add_u32 s{sMLs}, s{sMLs}, {hex(ML)}")
    E(f"s_cmp_eq_u32 s{sW}, 7")
    E("s_cbranch_scc1 L_SVC_CLR")
    if opt.get("b0",1): E("s_barrier")
    kload(0,2)
    E("s_branch L_STATS")
    E("L_SVC_CLR:")
    E("s_setprio 3")
    E("v_mov_b32 v29, 0")
    E(f"s_mov_b32 s{sT}, {hex(EP)}")
    E(f"buffer_load_dword v{KR+4}, v29, {sr(SWS)}, s{sT} offen sc1")
    for i in range(4): E(f"v_mov_b32 v{KR+i}, -1")
    E("v_lshrrev_b32 v28, 5, v0")
    E("v_lshlrev_b32 v28, 14, v28")
    E("v_and_b32 v29, 31, v0")
    E("v_lshl_add_u32 v28, v29, 4, v28")
    for q in range(4):
        E(f"s_add_u32 s{sT}, s{sOPs}, {q*32768}")
        E(f"buffer_store_dwordx4 {vr(KR)}, v28, {sr(SWS)}, s{sT} offen sc1")
    E("v_and_b32 v29, 7, v0")
    E("v_lshlrev_b32 v29, 8, v29")
    E(f"buffer_store_dwordx2 {vr(KR,2)}, v29, {sr(SWS)}, s{sMLs} offen sc1")
    E(f"s_lshl_b32 s{sT}, s2, 10")
    E(f"s_add_u32 s{sT}, s{sT}, {hex(FP)}")
    E(f"buffer_store_dwordx4 {vr(KR)}, v{vV}, {sr(SWS)}, s{sT} offen sc1")
    E(f"s_add_u32 s{sT}, s{sT}, 0x40000")
    E(f"buffer_store_dwordx4 {vr(KR)}, v{vV}, {sr(SWS)}, s{sT} offen sc1")
    if opt.get("b0",1): E("s_barrier")
    E("L_STATS:")
    E(f"s_mov_b32 s{sPL}, 0x05040100"); E(f"s_mov_b32 s{sPH}, 0x07060302")
    E(f"s_mov_b32 s{sM2}, 0x00030003"); E(f"s_mov_b32 s{sM2+1}, 0x00030003")
    E(f"s_mov_b32 s{sM8}, 0x00ff00ff"); E(f"s_mov_b32 s{sM8+1}, 0x00ff00ff")
    E(f"s_mov_b32 s{sSC}, {hex(f2u(128**-0.5))}")
    E(f"s_mov_b32 s{sL2E}, {hex(f2u(1.4426950408889634))}")
    E(f"s_mov_b32 s{sHI}, 0xffff0000"); E(f"s_mov_b32 s{sFE}, 0xfffffffe")
    srd(SDB,26,256); srd(SO,24,4096); srd(SB1,18,7168); srd(SB2,22,2048)
    E(f"s_cmp_lt_u32 s2, 224")
    E(f"s_cselect_b32 s{SW2+2}, 0x700000, 0")
    E(f"s_cselect_b32 s{SB1+2}, 7168, 0")
    E(f"s_cmp_lt_u32 s{sW}, 4")
    E(f"s_cselect_b32 s{SW2}, s12, s20")
    E(f"s_cselect_b32 s{SW2+1}, s13, s21")
    E(f"s_cselect_b32 s{SW2+2}, 0x800000, s{SW2+2}")
    E(f"s_mov_b32 s{SW2+3}, 0x20000")
    E(f"v_lshlrev_b32 v{vW2}, 4, v{vN}")
    E(f"v_lshl_add_u32 v{vW2}, v{vG}, 12, v{vW2}")
    E("s_waitcnt vmcnt(17)")
    for i in range(16):
        E(f"v_lshlrev_b32 v{D+2*i}, 16, v{T+i}")
        E(f"v_and_b32 v{D+2*i+1}, s{sHI}, v{T+i}")
    def allred_parity(r,t):
        for k in (2,4,8):
            E(f"v_add_f32_dpp v{r}, v{r}, v{r} row_ror:{k} row_mask:0xf bank_mask:0xf")
        for sw in ("v_permlane16_swap_b32","v_permlane32_swap_b32"):
            E(f"v_mov_b32 v{t}, v{r}")
            E(f"{sw} v{r}, v{t}")
            E(f"v_add_f32 v{r}, v{r}, v{t}")
    def tree_sum(src,n,tmp):
        for a in range(4): E(f"v_add_f32 v{tmp+a}, v{src+a}, v{src+4+a}")
        for i in range(8,n): E(f"v_add_f32 v{tmp+(i&3)}, v{tmp+(i&3)}, v{src+i}")
        E(f"v_add_f32 v{tmp}, v{tmp}, v{tmp+1}"); E(f"v_add_f32 v{tmp+2}, v{tmp+2}, v{tmp+3}")
        E(f"v_add_f32 v{tmp}, v{tmp}, v{tmp+2}")
    tree_sum(D,32,T)
    allred_parity(T,T+1)
    E(f"v_mul_f32 v{T+4}, {hex(f2u(1/1024))}, v{T}")
    for i in range(32): E(f"v_sub_f32 v{D+i}, v{D+i}, v{T+4}")
    for a in range(4): E(f"v_mul_f32 v{T+a}, v{D+a}, v{D+a}")
    for i in range(4,32): E(f"v_fmac_f32 v{T+(i&3)}, v{D+i}, v{D+i}")
    E(f"v_add_f32 v{T}, v{T}, v{T+1}"); E(f"v_add_f32 v{T+2}, v{T+2}, v{T+3}"); E(f"v_add_f32 v{T}, v{T}, v{T+2}")
    allred_parity(T,T+1)
    E(f"v_mul_f32 v{T}, {hex(f2u(1/1024))}, v{T}")
    E(f"v_cvt_pk_bf16_f32 v{T+1}, v{T+4}, v{T}")
    E(f"v_lshlrev_b32 v{T+4}, 16, v{T+1}")
    E(f"v_and_b32 v{T}, s{sHI}, v{T+1}")
    E(f"v_add_f32 v{T}, {hex(f2u(1e-5))}, v{T}")
    E(f"v_cvt_pk_bf16_f32 v{T}, v{T}, v{T}")
    E(f"v_and_b32 v{T}, s{sHI}, v{T}")
    E(f"v_sqrt_f32 v{T}, v{T}")
    E(f"v_cvt_pk_bf16_f32 v{T}, v{T}, v{T}")
    E(f"v_and_b32 v{T}, s{sHI}, v{T}")
    E(f"v_rcp_f32 v{T+1}, v{T}")
    E("s_waitcnt vmcnt(16)")
    for i in range(4):
        E(f"v_lshlrev_b32 v{D+2*i}, 16, v{XF+i}")
        E(f"v_and_b32 v{D+2*i+1}, s{sHI}, v{XF+i}")
    for i in range(8): E(f"v_sub_f32 v{D+i}, v{D+i}, v{T+4}")
    for i in range(4): E(f"v_cvt_pk_bf16_f32 v{XF+i}, v{D+2*i}, v{D+2*i+1}")
    for i in range(4):
        E(f"v_lshlrev_b32 v{D+2*i}, 16, v{XF+i}")
        E(f"v_and_b32 v{D+2*i+1}, s{sHI}, v{XF+i}")
    for i in range(8): E(f"v_mul_f32 v{D+8+i}, v{D+i}, v{T+1}")
    for i in range(8): E(f"v_fma_f32 v{D+i}, -v{D+8+i}, v{T}, v{D+i}")
    for i in range(8): E(f"v_fmac_f32 v{D+8+i}, v{D+i}, v{T+1}")
    for i in range(4): E(f"v_cvt_pk_bf16_f32 v{XF+i}, v{D+8+2*i}, v{D+8+2*i+1}")
    stamp()
    def perms(R,e,dst):
        w=e>>1; sel=sPH if e&1 else sPL
        for u in range(4):
            E(f"v_perm_b32 v{dst+u}, v{R+4*(2*u+1)+w}, v{R+4*(2*u)+w}, s{sel}")
    def tile_mm(R, order, mm):
        for idx,e in enumerate(order):
            perms(R,e,T+4*(idx&3))
            if idx>0: mm(order[idx-1],T+4*((idx-1)&3))
        mm(order[-1],T+4*((len(order)-1)&3))
    E(f"v_lshlrev_b32 v30, 9, v{vN}")
    E(f"v_lshl_add_u32 v30, v{vG}, 7, v30")
    E(f"s_lshl_b32 s{sT}, s{sW}, 10")
    E(f"v_add_u32 v30, s{sT}, v30")
    E("s_waitcnt vmcnt(8)")
    stamp()
    tile_mm(X, list(range(8)), lambda e,a: E(f"v_mfma_f32_16x16x32_bf16 {vr(D+4*e)}, {vr(a)}, {vr(XF)}, 0"))
    def gemv_to_lds():
        E(f"s_mov_b64 exec, s[{sM2}:{sM2+1}]")
        for e in range(8): E(f"ds_write_b128 v30, {vr(D+4*e)} offset:{WP+16*e}")
        E("s_mov_b64 exec, -1")
        E("s_waitcnt lgkmcnt(0)")
    gemv_to_lds()
    E("s_barrier")
    stamp()
    E(f"s_cmp_eq_u32 s{sW}, 7")
    E("s_cbranch_scc1 L_SVC")
    kload(2,8); vload(0,V0); vload(1,X)
    stamp()
    E("s_barrier")
    E("s_branch L_QK")
    E("L_SVC:")
    R=KR+8
    for w in range(8): E(f"ds_read_b128 {vr(R+4*w)}, v{vV} offset:{WP+1024*w}")
    E("s_waitcnt vmcnt(7)")
    E(f"v_readfirstlane_b32 s{sEp}, v{KR+4}")
    E(f"s_add_u32 s{sEp}, s{sEp}, 1")
    E(f"s_mul_i32 s{sTag}, s{sEp}, 0x9e3779b1")
    E(f"s_lshr_b32 s{sT}, s{sTag}, 8"); E(f"s_lshr_b32 s{sT2}, s{sTag}, 16"); E(f"s_lshr_b32 s{sT3}, s{sTag}, 24")
    E("v_mov_b32 v28, 0xff")
    E("s_waitcnt lgkmcnt(0)")
    for st in (16,8,4):
        for i in range(0,st,2): E(f"v_pk_add_f32 {vr(R+i,2)}, {vr(R+i,2)}, {vr(R+st+i,2)}")
    for i,sx in enumerate((sTag,sT,sT2,sT3)): E(f"v_bfi_b32 v{R+i}, v28, s{sx}, v{R+i}")
    E(f"s_lshl_b32 s{sT}, s2, 10")
    E(f"buffer_store_dwordx4 {vr(R)}, v{vV}, {sr(SWS)}, s{sT} offen sc1")
    E("v_lshrrev_b32 v28, 5, v0")
    E("v_and_b32 v29, 31, v0")
    E("v_lshlrev_b32 v30, 12, v28")
    E("v_lshl_add_u32 v30, v29, 4, v30")
    E(f"s_and_b32 s{sT}, s2, 3")
    E(f"s_lshl_b32 s{sT}, s{sT}, 15")
    E(f"s_lshr_b32 s{sT2}, s2, 2")
    E(f"s_and_b32 s{sT2}, s{sT2}, 1")
    E(f"s_lshl_b32 s{sT2}, s{sT2}, 9")
    E(f"s_add_u32 s{sT}, s{sT}, s{sT2}")
    QG=KR+48
    def qloads():
        for hp in range(4):
            E(f"s_add_u32 s{sT2}, s{sT}, {hp*0x2000}")
            for ks in range(4):
                E(f"buffer_load_dwordx4 {vr(QG+16*hp+4*ks)}, v30, {sr(SWS)}, s{sT2} offen offset:{1024*ks} sc1")
    qloads()
    E("v_mul_u32_u24 v28, 272, v28")
    E("v_lshrrev_b32 v26, 3, v29")
    E("v_lshl_add_u32 v28, v26, 6, v28")
    E("v_and_b32 v26, 7, v29")
    E("v_lshl_add_u32 v28, v26, 1, v28")
    E(f"v_mov_b32 v26, s{sTag}")
    E("v_mov_b32 v27, 0")
    E(f"s_lshl_b32 s{sT3}, s2, 2")
    E(f"s_add_u32 s{sT3}, s{sT3}, {hex(FL)}")
    E("s_mov_b32 s98, 0x0c0c0400"); E("s_mov_b32 s99, 0x04000c0c")
    E("s_waitcnt vmcnt(16)")
    stamp()
    E("s_mov_b64 exec, 1")
    E(f"buffer_store_dword v26, v27, {sr(SWS)}, s{sT3} offen sc1")
    E("s_mov_b64 exec, -1")
    E(f"s_mov_b32 s{sCnt}, 0")
    E("s_waitcnt vmcnt(1)")
    E("L_POLL0:")
    E("v_mov_b32 v27, 0")
    for i in range(16):
        q=QG+4*i
        E(f"v_perm_b32 v{T}, v{q+1}, v{q}, s98")
        E(f"v_perm_b32 v{T+1}, v{q+3}, v{q+2}, s99")
        E(f"v_or3_b32 v{T}, v{T}, v{T+1}, 0")
        E(f"v_xor_b32 v{T}, s{sTag}, v{T}")
        E(f"v_or_b32 v27, v27, v{T}")
    E("v_cmp_ne_u32 vcc, 0, v27")
    E("s_cbranch_vccz L_POLL0_DONE")
    E(f"s_add_u32 s{sCnt}, s{sCnt}, 1")
    E(f"s_cmp_gt_u32 s{sCnt}, 0x20000")
    E("s_cbranch_scc1 L_POLL0_DONE")
    E("s_mov_b64 exec, vcc")
    qloads()
    E("s_mov_b64 exec, -1")
    E("s_waitcnt vmcnt(0)")
    E("s_branch L_POLL0")
    E("L_POLL0_DONE:")
    stamp()
    for hp in range(4):
        b=QG+16*hp
        for i in (0,2): E(f"v_pk_add_f32 {vr(b+i,2)}, {vr(b+i,2)}, {vr(b+4+i,2)}")
        for i in (0,2): E(f"v_pk_add_f32 {vr(b+8+i,2)}, {vr(b+8+i,2)}, {vr(b+12+i,2)}")
        for i in (0,2): E(f"v_pk_add_f32 {vr(b+i,2)}, {vr(b+i,2)}, {vr(b+8+i,2)}")
        E(f"v_cvt_pk_bf16_f32 v{b}, v{b}, v{b+1}")
        E(f"v_cvt_pk_bf16_f32 v{b+1}, v{b+2}, v{b+3}")
        o=QB+hp*544
        E(f"ds_write_b16 v28, v{b} offset:{o}")
        E(f"ds_write_b16_d16_hi v28, v{b} offset:{o+16}")
        E(f"ds_write_b16 v28, v{b+1} offset:{o+32}")
        E(f"ds_write_b16_d16_hi v28, v{b+1} offset:{o+48}")
    E("s_waitcnt lgkmcnt(0)")
    E("s_barrier")
    kload(0,8)
    E(f"s_mov_b32 s{sT}, {hex(FL)}")
    E(f"buffer_load_dwordx4 {vr(XF)}, v{vV}, {sr(SWS)}, s{sT} offen sc1")
    vload(0,V0); vload(1,X)
    E("s_setprio 0")
    E("L_QK:")
    if DIAG: stamp_i[0]=7
    stamp()
    E(f"v_and_b32 v28, 7, v0")
    E("v_mul_u32_u24 v28, 272, v28")
    E(f"v_lshl_add_u32 v28, v{vG}, 4, v28")
    for kk in range(4): E(f"ds_read_b128 {vr(T+4*kk)}, v28 offset:{QB+64*kk}")
    E("s_waitcnt lgkmcnt(0)")
    waits=[40,40,32,24]
    for p in range(4):
        E(f"s_waitcnt vmcnt({waits[p]})")
        for kk in range(4):
            for t in (2*p,2*p+1):
                c="0" if kk==0 else vr(D+4*t)
                E(f"v_mfma_f32_16x16x32_bf16 {vr(D+4*t)}, {vr(KR+16*t+4*kk)}, {vr(T+4*kk)}, {c}")
        if p==0: vload(2,KR)
    stamp()
    HX=144; B1R=152; XFN=156; B2F=157; ACC=128
    E(f"s_and_b32 s{sT2}, s{sW}, 3")
    vload(3,KR+32)
    E(f"s_lshl_b32 s{sT}, s{sS}, 18")
    E(f"s_lshl_b32 s{sT3}, s{sT2}, 16")
    E(f"s_add_u32 s{sT}, s{sT}, s{sT3}")
    E(f"s_and_b32 s{sT3}, s2, 7")
    E(f"s_lshl_b32 s{sT3}, s{sT3}, 8")
    E(f"s_add_u32 s{sT}, s{sT}, s{sT3}")
    WT=KR+64
    for j in range(8):
        off=(8*(j&3)+(j>>2))*2048
        E(f"s_add_u32 s{sT3}, s{sT}, {off&~4095}")
        E(f"buffer_load_dwordx4 {vr(WT+4*j)}, v{vW2}, {sr(SW2)}, s{sT3} offen offset:{off&4095} {NTW}")
    stamp()
    for rnd in range(2):
        for i in range(16): E(f"v_cvt_pk_bf16_f32 v{T+i}, v{D+2*i}, v{D+2*i+1}")
        for i in range(16):
            E(f"v_lshlrev_b32 v{D+2*i}, 16, v{T+i}")
            E(f"v_and_b32 v{D+2*i+1}, s{sHI}, v{T+i}")
        if rnd==0:
            for i in range(32): E(f"v_mul_f32 v{D+i}, s{sSC}, v{D+i}")
    for a in range(4): E(f"v_max3_f32 v{T+a}, v{D+a}, v{D+4+a}, v{D+8+a}")
    for i in range(12,28,8):
        for a in range(4): E(f"v_max3_f32 v{T+a}, v{T+a}, v{D+i+a}, v{D+i+4+a}")
    for a in range(4): E(f"v_max_f32 v{T+a}, v{T+a}, v{D+28+a}")
    E(f"v_max3_f32 v{T}, v{T}, v{T+1}, v{T+2}"); E(f"v_max_f32 v{T}, v{T}, v{T+3}")
    def allred_g(r,t,op):
        for sw in ("v_permlane16_swap_b32","v_permlane32_swap_b32"):
            E(f"v_mov_b32 v{t}, v{r}")
            E(f"{sw} v{r}, v{t}")
            E(f"{op} v{r}, v{r}, v{t}")
    allred_g(T,T+1,"v_max_f32")
    E("v_and_b32 v28, 7, v0")
    E("v_lshlrev_b32 v28, 5, v28")
    E(f"s_lshl_b32 s{sT}, s{sW}, 2")
    E(f"v_add_u32 v29, s{sT}, v28")
    E("s_mov_b64 exec, 0xff")
    E(f"ds_write_b32 v29, v{T} offset:{MXB}")
    E("s_mov_b64 exec, -1")
    E(f"s_cmp_lg_u32 s{sW}, 7")
    E("s_cbranch_scc1 L_B3")
    E(f"s_mov_b32 s{sCnt}, 0")
    E("s_waitcnt vmcnt(40)")
    E("L_POLLF:")
    for i in range(4): E(f"v_xor_b32 v{XF+i}, s{sTag}, v{XF+i}")
    E(f"v_or3_b32 v{XF}, v{XF}, v{XF+1}, v{XF+2}")
    E(f"v_or_b32 v{XF}, v{XF}, v{XF+3}")
    E(f"v_cmp_ne_u32 vcc, 0, v{XF}")
    E("s_cbranch_vccz L_B3")
    E(f"s_add_u32 s{sCnt}, s{sCnt}, 1")
    E(f"s_cmp_gt_u32 s{sCnt}, 0x20000")
    E("s_cbranch_scc1 L_B3")
    E(f"s_mov_b32 s{sT}, {hex(FL)}")
    E(f"buffer_load_dwordx4 {vr(XF)}, v{vV}, {sr(SWS)}, s{sT} offen sc1")
    E("s_waitcnt vmcnt(0)")
    E("s_branch L_POLLF")
    E("L_B3:")
    E("s_waitcnt lgkmcnt(0)")
    E("s_barrier")
    stamp()
    E(f"ds_read_b128 {vr(T)}, v28 offset:{MXB}")
    E(f"ds_read_b128 {vr(T+4)}, v28 offset:{MXB+16}")
    HX=144; B1R=152; XFN=156; B2F=157; ACC=128
    E(f"v_lshrrev_b32 v26, 1, v{vN}")
    E("v_and_b32 v26, 3, v26")
    E("v_lshlrev_b32 v26, 10, v26")
    E("v_and_b32 v27, 1, v0")
    E("v_lshl_add_u32 v26, v27, 9, v26")
    E(f"v_lshl_add_u32 v26, v{vG}, 5, v26")
    E(f"s_lshl_b32 s{sT}, s{sS}, 12")
    E(f"s_and_b32 s{sT2}, s{sW}, 3")
    E(f"s_lshl_b32 s{sT3}, s{sT2}, 7")
    E(f"s_add_u32 s{sT}, s{sT}, s{sT3}")
    E(f"s_add_u32 s{sT}, s{sT}, 0x20000")
    E(f"buffer_load_dwordx4 {vr(HX)}, v26, {sr(SWS)}, s{sT} offen sc1")
    E(f"buffer_load_dwordx4 {vr(HX+4)}, v26, {sr(SWS)}, s{sT} offen offset:16 sc1")
    E(f"s_lshl_b32 s{sT}, s{sS}, 8")
    E(f"s_lshl_b32 s{sT3}, s{sT2}, 6")
    E(f"s_add_u32 s{sT}, s{sT}, s{sT3}")
    E(f"v_lshlrev_b32 v27, 2, v{vG}")
    for r in range(4): E(f"buffer_load_dword v{B1R+r}, v27, {sr(SB1)}, s{sT} offen offset:{16*r}")
    E("v_lshrrev_b32 v26, 1, v0")
    E("v_and_b32 v26, 3, v26")
    E("v_lshlrev_b32 v26, 4, v26")
    E("v_and_b32 v27, 1, v0")
    E("v_lshl_add_u32 v158, v27, 1, v26")
    E(f"s_and_b32 s{sT}, s2, 7")
    E(f"s_lshl_b32 s{sT}, s{sT}, 8")
    E(f"s_lshr_b32 s{sT3}, s{sS}, 2")
    E(f"s_and_b32 s{sT3}, s{sT3}, 3")
    E(f"s_lshl_b32 s{sT3}, s{sT3}, 6")
    E(f"s_add_u32 s{sT}, s{sT}, s{sT3}")
    E(f"s_and_b32 s{sT3}, s{sS}, 3")
    E(f"s_lshl_b32 s{sT3}, s{sT3}, 2")
    E(f"s_add_u32 s{sT}, s{sT}, s{sT3}")
    E(f"s_lshr_b32 s{sT3}, s{sS}, 4")
    E(f"s_lshl_b32 s{sT3}, s{sT3}, 11")
    E(f"s_add_u32 s{sFin}, s{sT}, s{sT3}")
    E(f"buffer_load_ushort v{XFN}, v158, {sr(SX)}, s{sFin} offen")
    E(f"buffer_load_ushort v{B2F}, v158, {sr(SB2)}, s{sT} offen")
    E("s_waitcnt lgkmcnt(0)")
    E(f"v_max3_f32 v{T}, v{T}, v{T+1}, v{T+2}"); E(f"v_max3_f32 v{T+4}, v{T+4}, v{T+5}, v{T+6}")
    E(f"v_max3_f32 v{T}, v{T}, v{T+3}, v{T+7}"); E(f"v_max_f32 v{T}, v{T}, v{T+4}")
    E(f"v_mul_f32 v{vM}, s{sL2E}, v{T}")
    for i in range(32): E(f"v_fma_f32 v{D+i}, v{D+i}, s{sL2E}, -v{vM}")
    for i in range(32): E(f"v_exp_f32 v{D+i}, v{D+i}")
    tree_sum(D,32,T)
    allred_g(T,T+1,"v_add_f32")
    E("s_mov_b64 exec, 0xff")
    E(f"ds_write_b32 v29, v{T} offset:{LSB}")
    E("s_mov_b64 exec, -1")
    for u in range(4):
        b=D+8*u
        for i in range(4): E(f"v_cvt_pk_bf16_f32 v{b+i}, v{b+2*i}, v{b+2*i+1}")
        for i in range(4): E(f"v_cndmask_b32 v{b+4+i}, v{b+i}, 0, s[{sM8}:{sM8+1}]")
        for i in range(4): E(f"v_cndmask_b32 v{b+i}, 0, v{b+i}, s[{sM8}:{sM8+1}]")
    stamp()
    vb=[V0,X,KR,KR+32]; vw=[40,32,24,16]
    order=[0,2,4,6,1,3,5,7]
    for u in range(4):
        if u==3:
            E(f"v_mul_u32_u24 v28, 20, v{vG}")
            E(f"v_add_lshl_u32 v28, v28, v{vN}, 4")
            E(f"s_mul_i32 s{sT}, s{sW}, {OPW}")
            E(f"v_add_u32 v28, s{sT}, v28")
            stamp()
        E(f"s_waitcnt vmcnt({vw[u]})")
        if u==3: stamp()
        def mm(e,a,u=u):
            c="0" if (u==0 and e%2==0) else vr(ACC+4*(e>>1))
            E(f"v_mfma_f32_16x16x32_bf16 {vr(ACC+4*(e>>1))}, {vr(a)}, {vr(D+8*u+4*(e&1))}, {c}")
        tile_mm(vb[u],order,mm)
    for q in range(4): E(f"ds_write_b128 v28, {vr(ACC+4*q)} offset:{OPB+q*SA}")
    E("s_waitcnt lgkmcnt(0)")
    E("s_barrier")
    stamp()
    E(f"s_cmp_ge_u32 s{sW}, 4")
    E("s_cbranch_scc1 L_W2")
    E("v_and_b32 v28, 7, v0")
    E("v_lshrrev_b32 v29, 1, v28")
    E("v_mul_u32_u24 v29, 81, v29")
    E("v_and_b32 v28, 1, v0")
    E("v_lshl_add_u32 v29, v28, 3, v29")
    E("v_bfe_u32 v28, v0, 3, 2")
    E("v_mul_u32_u24 v28, 20, v28")
    E("v_add_u32 v29, v28, v29")
    E("v_lshrrev_b32 v28, 5, v0")
    E("v_add_u32 v29, v28, v29")
    E(f"s_lshl_b32 s{sT}, s{sW}, 1")
    E(f"v_add_lshl_u32 v29, v29, s{sT}, 4")
    for w in range(8): E(f"ds_read_b128 {vr(V0+4*w)}, v29 offset:{OPB+OPW*w}")
    E("v_lshlrev_b32 v28, 14, v28")
    E("v_and_b32 v29, 31, v0")
    E("v_lshl_add_u32 v28, v29, 4, v28")
    E(f"s_lshl_b32 s{sT}, s{sW}, 15")
    E(f"s_add_u32 s{sT}, s{sT}, s{sOPs}")
    E("s_waitcnt lgkmcnt(0)")
    for st in (16,8,4):
        for i in range(0,st,2): E(f"v_pk_add_f32 {vr(V0+i,2)}, {vr(V0+i,2)}, {vr(V0+st+i,2)}")
    E(f"v_min_u32 v{V0}, s{sFE}, v{V0}")
    E(f"buffer_store_dwordx4 {vr(V0)}, v28, {sr(SWS)}, s{sT} offen sc1")
    stamp()
    G=V0+4; MLR=V0+36
    E("v_and_b32 v28, 1, v0")
    E(f"v_lshrrev_b32 v29, 1, v{vN}")
    E("v_lshlrev_b32 v26, 19, v28")
    E("v_lshl_add_u32 v26, v29, 11, v26")
    E(f"v_lshl_add_u32 v26, v{vG}, 5, v26")
    E("v_lshlrev_b32 v27, 13, v28")
    E("v_lshl_add_u32 v27, v29, 5, v27")
    E(f"s_lshl_b32 s{sT}, s{sS}, 14")
    E(f"s_lshl_b32 s{sT2}, s{sW}, 7")
    E(f"s_add_u32 s{sT}, s{sT}, s{sT2}")
    E(f"s_add_u32 s{sT}, s{sT}, {hex(OPR)}")
    E(f"s_lshl_b32 s{sT2}, s{sS}, 8")
    E(f"s_add_u32 s{sT2}, s{sT2}, {hex(ML)}")
    def hop1_loads():
        E(f"buffer_load_dwordx4 {vr(MLR)}, v27, {sr(SWS)}, s{sT2} offen sc1")
        E(f"buffer_load_dwordx4 {vr(MLR+4)}, v27, {sr(SWS)}, s{sT2} offen offset:16 sc1")
        for i in range(4):
            for h in range(2):
                E(f"buffer_load_dwordx4 {vr(G+8*i+4*h)}, v26, {sr(SWS)}, s{sT} offen offset:{512*i+16*h} sc1")
    hop1_loads()
    E("s_waitcnt vmcnt(11)")
    stamp()
    for e in range(8): perms(WT,e,KR+4*e)
    E(f"s_mov_b32 s{sCnt}, 0")
    E("L_POLL1:")
    E("s_waitcnt vmcnt(0)")
    E(f"v_max3_u32 v28, v{MLR}, v{MLR+2}, v{MLR+4}")
    E(f"v_max3_u32 v29, v{MLR+6}, v{G}, v{G+4}")
    E(f"v_max3_u32 v28, v28, v{G+8}, v{G+12}")
    E(f"v_max3_u32 v29, v29, v{G+16}, v{G+20}")
    E(f"v_max3_u32 v28, v28, v{G+24}, v{G+28}")
    E("v_max_u32 v28, v28, v29")
    E("v_cmp_eq_u32 vcc, -1, v28")
    E("s_cbranch_vccz L_POLL1_DONE")
    E(f"s_add_u32 s{sCnt}, s{sCnt}, 1")
    E(f"s_cmp_gt_u32 s{sCnt}, 0x40000")
    E("s_cbranch_scc1 L_POLL1_DONE")
    hop1_loads()
    E("s_branch L_POLL1")
    E("L_POLL1_DONE:")
    stamp()
    E(f"v_max3_f32 v28, v{MLR}, v{MLR+2}, v{MLR+4}")
    E(f"v_max_f32 v28, v28, v{MLR+6}")
    for k in (2,4,8): E(f"v_max_f32_dpp v28, v28, v28 row_ror:{k} row_mask:0xf bank_mask:0xf")
    for i in range(4): E(f"v_sub_f32 v{MLR+2*i}, v{MLR+2*i}, v28")
    for i in range(4): E(f"v_exp_f32 v{MLR+2*i}, v{MLR+2*i}")
    E(f"v_mul_f32 v29, v{MLR}, v{MLR+1}")
    for i in range(1,4): E(f"v_fmac_f32 v29, v{MLR+2*i}, v{MLR+2*i+1}")
    for j in range(8): E(f"v_mul_f32 v{G+j}, v{G+j}, v{MLR}")
    for i in range(1,4):
        for j in range(8): E(f"v_fmac_f32 v{G+j}, v{G+8*i+j}, v{MLR+2*i}")
    for k in (2,4,8):
        E(f"v_add_f32_dpp v29, v29, v29 row_ror:{k} row_mask:0xf bank_mask:0xf")
        for j in range(8): E(f"v_add_f32_dpp v{G+j}, v{G+j}, v{G+j} row_ror:{k} row_mask:0xf bank_mask:0xf")
    E("v_rcp_f32 v29, v29")
    for j in range(8): E(f"v_mul_f32 v{G+j}, v{G+j}, v29")
    for i in range(4): E(f"v_cvt_pk_bf16_f32 v{XF+i}, v{G+2*i}, v{G+2*i+1}")
    E("s_branch L_TAILMM")
    E("L_W2:")
    E(f"s_cmp_lg_u32 s{sW}, 4")
    E("s_cbranch_scc1 L_W2B")
    E("v_and_b32 v28, 7, v0")
    E("v_lshlrev_b32 v29, 5, v28")
    E(f"ds_read_b128 {vr(T)}, v29 offset:{LSB}")
    E(f"ds_read_b128 {vr(T+4)}, v29 offset:{LSB+16}")
    E("v_lshlrev_b32 v28, 8, v28")
    E(f"v_min_u32 v{T+8}, s{sFE}, v{vM}")
    E("s_waitcnt lgkmcnt(0)")
    E(f"v_pk_add_f32 {vr(T,2)}, {vr(T,2)}, {vr(T+2,2)}")
    E(f"v_pk_add_f32 {vr(T+4,2)}, {vr(T+4,2)}, {vr(T+6,2)}")
    E(f"v_pk_add_f32 {vr(T,2)}, {vr(T,2)}, {vr(T+4,2)}")
    E(f"v_add_f32 v{T+9}, v{T}, v{T+1}")
    E("s_mov_b64 exec, 0xff")
    E(f"buffer_store_dwordx2 {vr(T+8,2)}, v28, {sr(SWS)}, s{sMLs} offen sc1")
    E("s_mov_b64 exec, -1")
    E("s_waitcnt vmcnt(1)")
    E("s_branch L_W2C")
    E("L_W2B:")
    E("s_waitcnt vmcnt(0)")
    E("L_W2C:")
    for k in (2,4):
        for i in range(8): E(f"v_add_f32_dpp v{HX+i}, v{HX+i}, v{HX+i} row_ror:{k} row_mask:0xf bank_mask:0xf")
    for i in range(4): E(f"v_cvt_pk_bf16_f32 v{T+i}, v{HX+i}, v{HX+4+i}")
    for i in range(4):
        E(f"v_lshlrev_b32 v{HX+i}, 16, v{T+i}"); E(f"v_and_b32 v{HX+4+i}, s{sHI}, v{T+i}")
        E(f"v_lshlrev_b32 v{T+4+i}, 16, v{B1R+i}"); E(f"v_and_b32 v{T+8+i}, s{sHI}, v{B1R+i}")
    for i in range(8): E(f"v_add_f32 v{HX+i}, v{HX+i}, v{T+4+i}")
    for i in range(4): E(f"v_cvt_pk_bf16_f32 v{T+i}, v{HX+i}, v{HX+4+i}")
    for i in range(4):
        E(f"v_lshlrev_b32 v{HX+i}, 16, v{T+i}"); E(f"v_and_b32 v{HX+4+i}, s{sHI}, v{T+i}")
    for i in range(8): E(f"v_cmp_gt_f32 vcc, v{HX+i}, 0") or E(f"v_cndmask_b32 v{HX+i}, 0, v{HX+i}, vcc")
    for i in range(8): E(f"v_mul_f32 v{HX+i}, v{HX+i}, v{HX+i}")
    for i in range(4): E(f"v_cvt_pk_bf16_f32 v{XF+i}, v{HX+2*i}, v{HX+2*i+1}")
    for e in range(8): perms(WT,e,KR+4*e)
    E("L_TAILMM:")
    for e in range(8): E(f"v_mfma_f32_16x16x32_bf16 {vr(D+4*e)}, {vr(KR+4*e)}, {vr(XF)}, 0")
    E(f"v_lshlrev_b32 v30, 9, v{vN}")
    E(f"v_lshl_add_u32 v30, v{vG}, 7, v30")
    E(f"s_lshl_b32 s{sT}, s{sW}, 10")
    E(f"v_add_u32 v30, s{sT}, v30")
    gemv_to_lds()
    if DIAG: stamp_i[0]=19
    stamp()
    E("s_barrier")
    E(f"s_cmp_eq_u32 s{sW}, 7")
    E("s_cbranch_scc1 L_FIN")
    E(f"s_and_b32 s{sT}, s{sW}, 3")
    E(f"s_cmp_lg_u32 s{sT}, 0")
    E("s_cbranch_scc1 L_DONE")
    E(f"s_lshl_b32 s{sT}, s{sW}, 10")
    E(f"v_add_u32 v28, s{sT}, v{vV}")
    for w in range(4): E(f"ds_read_b128 {vr(V0+4*w)}, v28 offset:{WP+1024*w}")
    E(f"s_lshl_b32 s{sT}, s{sW}, 16")
    E(f"s_lshl_b32 s{sT2}, s2, 10")
    E(f"s_add_u32 s{sT}, s{sT}, s{sT2}")
    E(f"s_add_u32 s{sT}, s{sT}, {hex(FP)}")
    E("s_waitcnt lgkmcnt(0)")
    for st in (8,4):
        for i in range(0,st,2): E(f"v_pk_add_f32 {vr(V0+i,2)}, {vr(V0+i,2)}, {vr(V0+st+i,2)}")
    E(f"v_min_u32 v{V0}, s{sFE}, v{V0}")
    E(f"buffer_store_dwordx4 {vr(V0)}, v{vV}, {sr(SWS)}, s{sT} offen sc1")
    stamp()
    E("s_branch L_DONE")
    E("L_FIN:")
    E("v_lshrrev_b32 v28, 5, v0")
    E("v_lshlrev_b32 v28, 18, v28")
    E("v_bfe_u32 v29, v0, 1, 4")
    E("v_lshl_add_u32 v28, v29, 13, v28")
    E("v_and_b32 v29, 1, v0")
    E("v_lshl_add_u32 v28, v29, 4, v28")
    E(f"s_and_b32 s{sT}, s2, 7")
    E(f"s_lshl_b32 s{sT}, s{sT}, 10")
    E(f"s_lshl_b32 s{sT2}, s{sS}, 5")
    E(f"s_add_u32 s{sT}, s{sT}, s{sT2}")
    E(f"s_add_u32 s{sT}, s{sT}, {hex(FP)}")
    E(f"s_add_u32 s{sT2}, s{sT}, 0x20000")
    E(f"s_mov_b32 s{sCnt}, 0")
    E(f"v_lshlrev_b32 v{XFN}, 16, v{XFN}")
    E(f"v_lshlrev_b32 v{B2F}, 16, v{B2F}")
    E("s_mov_b32 s98, 0xcccccccc"); E("s_mov_b32 s99, 0xcccccccc")
    E("s_mov_b32 s100, 0xf0f0f0f0"); E("s_mov_b32 s101, 0xf0f0f0f0")
    E("L_POLL2:")
    E(f"buffer_load_dwordx4 {vr(V0)}, v28, {sr(SWS)}, s{sT} offen sc1")
    E(f"buffer_load_dwordx4 {vr(V0+4)}, v28, {sr(SWS)}, s{sT2} offen sc1")
    E(f"s_add_u32 s{sCnt}, s{sCnt}, 1")
    E(f"s_cmp_gt_u32 s{sCnt}, 0x40000")
    E("s_waitcnt vmcnt(0)")
    E(f"v_max_u32 v29, v{V0}, v{V0+4}")
    E("v_cmp_eq_u32 vcc, -1, v29")
    E("s_cbranch_scc1 L_POLL2_DONE")
    E("s_cbranch_vccnz L_POLL2")
    E("L_POLL2_DONE:")
    if DIAG: stamp_i[0]=21
    stamp()
    for i in (0,2): E(f"v_pk_add_f32 {vr(V0+i,2)}, {vr(V0+i,2)}, {vr(V0+4+i,2)}")
    for k in (2,4,8):
        for i in range(4): E(f"v_add_f32_dpp v{V0+i}, v{V0+i}, v{V0+i} row_ror:{k} row_mask:0xf bank_mask:0xf")
    E(f"v_cndmask_b32 v{V0}, v{V0}, v{V0+1}, s[98:99]")
    E(f"v_cndmask_b32 v{V0+2}, v{V0+2}, v{V0+3}, s[98:99]")
    E(f"v_cndmask_b32 v{V0}, v{V0}, v{V0+2}, s[100:101]")
    E(f"v_mov_b32 v{V0+1}, v{V0}")
    E(f"v_permlane16_swap_b32 v{V0}, v{V0+1}")
    E(f"v_add_f32 v{V0}, v{V0}, v{V0+1}")
    E(f"v_mov_b32 v{V0+1}, v{V0}")
    E(f"v_permlane32_swap_b32 v{V0}, v{V0+1}")
    E(f"v_cvt_pk_bf16_f32 v{V0+2}, v{V0}, v{V0+1}")
    E(f"v_lshlrev_b32 v{V0}, 16, v{V0+2}")
    E(f"v_and_b32 v{V0+1}, s{sHI}, v{V0+2}")
    E(f"v_add_f32 v{V0}, v{XFN}, v{V0}")
    E(f"v_add_f32 v{V0+1}, v{V0+1}, v{B2F}")
    E(f"v_cvt_pk_bf16_f32 v{V0+2}, v{V0}, v{V0+1}")
    E(f"v_lshlrev_b32 v{V0}, 16, v{V0+2}")
    E(f"v_and_b32 v{V0+1}, s{sHI}, v{V0+2}")
    E(f"v_add_f32 v{V0}, v{V0}, v{V0+1}")
    E(f"v_cvt_pk_bf16_f32 v{V0}, v{V0}, v{V0}")
    E("s_mov_b64 exec, 0xff")
    E(f"buffer_store_short v{V0}, v158, {sr(SO)}, s{sFin} offen")
    E("s_cmp_lg_u32 s2, 0")
    E("s_cbranch_scc1 L_DONE")
    E("s_mov_b64 exec, 1")
    E(f"v_mov_b32 v28, s{sEp}")
    E("v_mov_b32 v29, 0")
    E(f"s_mov_b32 s{sT}, {hex(EP)}")
    E(f"buffer_store_dword v28, v29, {sr(SWS)}, s{sT} offen sc1")
    E("L_DONE:")
    if DIAG:
        stamp_i[0]=22
        E("s_mov_b64 exec, -1")
        E("s_waitcnt vmcnt(0)")
        stamp()
        E(f"s_lshl_b32 s{sT}, s2, 3")
        E(f"s_add_u32 s{sT}, s{sT}, s{sW}")
        E(f"s_lshl_b32 s{sT}, s{sT}, 8")
        E(f"s_add_u32 s{sT}, s{sT}, {hex(DG)}")
        E("v_lshlrev_b32 v28, 2, v0")
        E(f"buffer_store_dword v31, v28, {sr(SWS)}, s{sT} offen")
    E("L_END:")
    body=hazard_pass(L)
    ref=open(f"cdna_kernels/{NAME}.s.ref").read().split("\n")
    hdr=[l for l in ref if l.startswith(";") and "@launch" not in l]
    out=hdr+[f"; @launch grid=(256,1,1) block=(512,1,1) lds={LDS}",
      '.amdgcn_target "amdgcn-amd-amdhsa--gfx950"',".text",f".globl {NAME}_kernel",".p2align 8",
      f".type {NAME}_kernel,@function",f"{NAME}_kernel:"]+body+["s_endpgm",'.section .rodata,"a"',".p2align 6",
      f".amdhsa_kernel {NAME}_kernel","  .amdhsa_next_free_vgpr 256","  .amdhsa_next_free_sgpr 102",
      "  .amdhsa_accum_offset 256","  .amdhsa_group_segment_fixed_size 0","  .amdhsa_kernarg_size 104",
      "  .amdhsa_user_sgpr_count 2","  .amdhsa_user_sgpr_kernarg_segment_ptr 1",
      "  .amdhsa_system_sgpr_workgroup_id_x 1",".end_amdhsa_kernel",""]
    return "\n".join(out)

if __name__=="__main__":
    opt={}
    outp=f"cdna_kernels/{NAME}.s"
    for a in sys.argv[1:]:
        k,v=a.split("=",1)
        if k=="out": outp=v
        else:
            try: opt[k]=int(v,0)
            except: opt[k]=v
    open(outp,"w").write(gen(opt))
```

```python
import sys, struct, os
sys.path.insert(0, os.path.dirname(__file__))
from asmlib import hazard_pass
NAME="parallel_sum__gqa_block_cached__dense_activation_squared_relu__decode"
def f2u(x): return struct.unpack("<I", struct.pack("<f", x))[0]

def gen(opt):
    DIAG=opt.get("diag",0); NT=opt.get("nt","nt")
    NTW=opt.get("ntw",NT)
    PRIO=opt.get("prio",1)
    L=[]; E=L.append
    def vr(a,n=4): return f"v[{a}:{a+n-1}]"
    def sr(a,n=4): return f"s[{a}:{a+n-1}]"
    QP=0; EP=0x90000; OPR=0x100000; ML=0x200000; FPB=0x280000; FPA=0x300000; WSZ=0x400000; DG=0x400000
    WP=0; XB=0; QB=8192; MXB=QB+8*272; LSB=MXB+256; TGB=LSB+256; OPB=11008
    SA=81*16; OPW=4*SA
    LDS=OPB+8*OPW
    SX,SK,SV,SW1,SW2,SWS,SO,SB1,SB2=32,36,40,44,48,52,60,64,68
    sTag,sTg1,sTg2,sTg3=56,57,58,59
    sW,sKB,sT,sT2,sST,sPL,sPH,sM2,sM8=72,73,74,75,76,77,78,80,82
    sOPs,sMLs,sFin,sCnt,sSC,sL2E,sHI,sEp=84,85,86,87,88,89,90,91
    sCA,sCB=92,93; sS=94; sT3=95; sWT=79
    def stamp(i):
        if DIAG:
            E(f"s_memrealtime s[96:97]")
            E(f"s_waitcnt lgkmcnt(0)")
            E(f"v_writelane_b32 v31, s96, {i}")
    def prio(p):
        if PRIO: E(f"s_setprio {p}")
    vK,vV,vW1,vW2,vN,vG,vM=1,2,3,4,5,6,7
    vFF=3
    T=8; XF=24; KR=32; V0=160; X=192; D=224
    HX=144; B1R=152; XFN=156; B2F=157; ACC=128; WT=KR+64
    def tagit(r):
        for i,sx in enumerate((sTag,sTg1,sTg2,sTg3)): E(f"v_bfi_b32 v{r+i}, v{vFF}, s{sx}, v{r+i}")
    def tagchk(qs,t):
        for n,q in enumerate(qs):
            E(f"v_perm_b32 v{t}, v{q+1}, v{q}, s{sCA}")
            E(f"v_perm_b32 v{t+1}, v{q+3}, v{q+2}, s{sCB}")
            if n==0:
                E(f"v_or_b32 v{t+2}, v{t}, v{t+1}")
                if len(qs)>1: E(f"v_xor_b32 v{t+2}, s{sTag}, v{t+2}")
            else:
                E(f"v_or_b32 v{t}, v{t}, v{t+1}")
                E(f"v_xor_b32 v{t}, s{sTag}, v{t}")
                E(f"v_or_b32 v{t+2}, v{t+2}, v{t}")
        if len(qs)>1: E(f"v_cmp_ne_u32 vcc, 0, v{t+2}")
        else: E(f"v_cmp_ne_u32 vcc, s{sTag}, v{t+2}")
    E("s_cmp_ge_u32 s2, 0x100")
    E("s_cbranch_scc1 L_END")
    E("s_load_dwordx8 s[4:11], s[0:1], 0")
    E("s_load_dwordx8 s[12:19], s[0:1], 32")
    E("s_load_dwordx8 s[20:27], s[0:1], 64")
    E("s_load_dwordx2 s[28:29], s[0:1], 96")
    E("v_lshrrev_b32 v1, 6, v0")
    E("v_and_b32 v0, 63, v0")
    E(f"v_readfirstlane_b32 s{sW}, v1")
    E(f"v_and_b32 v{vN}, 15, v0")
    E(f"v_lshrrev_b32 v{vG}, 4, v0")
    if DIAG: E("v_mov_b32 v31, 0")
    E("v_and_b32 v10, 1, v0")
    E("v_lshlrev_b32 v10, 11, v10")
    E("v_lshrrev_b32 v11, 1, v0")
    E("v_lshl_add_u32 v28, v11, 4, v10")
    E(f"v_lshl_add_u32 v29, v{vG}, 4, v10")
    E(f"s_and_b32 s{sT}, s2, 3")
    E(f"s_lshl_b32 s{sT}, s{sT}, 8")
    E(f"s_lshl_b32 s{sT2}, s{sW}, 5")
    E(f"s_add_u32 s{sT}, s{sT}, s{sT2}")
    E(f"s_lshl_b32 s{sT3}, s{sT}, 1")
    E("s_cmp_lt_u32 s2, 0x80")
    E(f"s_movk_i32 s{sST}, 0x1c00")
    E(f"s_cselect_b32 s{sST}, 0x2000, s{sST}")
    E(f"s_mul_i32 s{sT}, s{sT}, s{sST}")
    E(f"s_lshr_b32 s{sT2}, s2, 2")
    E(f"s_and_b32 s{sT2}, s{sT2}, 31")
    E(f"s_lshl_b32 s{sCnt}, s{sT2}, 8")
    E(f"s_add_u32 s{sT}, s{sT}, s{sCnt}")
    E(f"s_lshl_b32 s{sCnt}, s{sST}, 3")
    E(f"v_lshlrev_b32 v{vW1}, 4, v{vN}")
    E(f"v_mad_u32_u24 v{vW1}, v{vG}, s{sCnt}, v{vW1}")
    E("s_waitcnt lgkmcnt(0)")
    stamp(0)
    def srd(r,lo,nrec):
        E(f"s_mov_b32 s{r}, s{lo}"); E(f"s_mov_b32 s{r+1}, s{lo+1}")
        if nrec is not None: E(f"s_mov_b32 s{r+2}, {hex(nrec)}")
        E(f"s_mov_b32 s{r+3}, 0x20000")
    srd(SX,4,4096)
    for i in range(4): E(f"buffer_load_dwordx4 {vr(T+4*i)}, v28, {sr(SX)}, 0 offen offset:{512*i}")
    E(f"buffer_load_dwordx4 {vr(XF)}, v29, {sr(SX)}, s{sT3} offen")
    E("s_cmp_lt_u32 s2, 0x80")
    E(f"s_cselect_b32 s{SW1}, s10, s16")
    E(f"s_cselect_b32 s{SW1+1}, s11, s17")
    E(f"s_mov_b32 s{SW1+2}, 0x700000")
    E(f"s_cselect_b32 s{SW1+2}, 0x800000, s{SW1+2}")
    E(f"s_cmp_lt_u32 s2, {128+112}")
    E(f"s_cselect_b32 s{SW1+2}, s{SW1+2}, 0")
    E(f"s_mov_b32 s{SW1+3}, 0x20000")
    for i in range(8):
        E(f"buffer_load_dwordx4 {vr(X+4*i)}, v{vW1}, {sr(SW1)}, s{sT} offen {NTW}")
        if i<7: E(f"s_add_u32 s{sT}, s{sT}, s{sST}")
    srd(SWS,28,WSZ+(0x100000 if DIAG else 0))
    E(f"s_cmp_lg_u32 s{sW}, 7")
    E("s_cbranch_scc1 L_NOEP")
    E("s_mov_b64 exec, 1")
    E(f"s_mov_b32 s{sT}, {hex(EP)}")
    E(f"buffer_load_dword v30, off, {sr(SWS)}, s{sT} sc1")
    E("s_mov_b64 exec, -1")
    E("L_NOEP:")
    srd(SK,6,0x4000000); srd(SV,8,0x4000000)
    E(f"s_and_b32 s{sT}, s2, 7")
    E(f"s_lshl_b32 s{sKB}, s{sT}, 23")
    E(f"s_lshr_b32 s{sS}, s2, 3")
    E(f"s_lshl_b32 s{sT2}, s{sS}, 18")
    E(f"s_add_u32 s{sKB}, s{sKB}, s{sT2}")
    E(f"s_lshl_b32 s{sT2}, s{sW}, 15")
    E(f"s_add_u32 s{sKB}, s{sKB}, s{sT2}")
    E(f"v_and_b32 v28, 3, v{vN}")
    E(f"v_lshlrev_b32 v28, 10, v28")
    E(f"v_lshrrev_b32 v29, 2, v{vN}")
    E(f"v_lshl_add_u32 v28, v29, 8, v28")
    E(f"v_lshl_add_u32 v{vK}, v{vG}, 4, v28")
    E(f"v_lshlrev_b32 v{vV}, 4, v0")
    def kload(t0,t1):
        for t in range(t0,t1):
            E(f"s_add_u32 s{sT}, s{sKB}, {4096*t}")
            for kk in range(4):
                E(f"buffer_load_dwordx4 {vr(KR+16*t+4*kk)}, v{vK}, {sr(SK)}, s{sT} offen offset:{64*kk} {NT}")
    def vload(u,base):
        for h in range(2):
            E(f"s_add_u32 s{sT}, s{sKB}, {8192*u+4096*h}")
            for i in range(4):
                E(f"buffer_load_dwordx4 {vr(base+16*h+4*i)}, v{vV}, {sr(SV)}, s{sT} offen offset:{1024*i} {NT}")
    KE=opt.get("kearly",0)
    if KE: kload(0,KE)
    E(f"s_and_b32 s{sT2}, s2, 7")
    E(f"s_lshl_b32 s{sOPs}, s{sT2}, 17")
    E(f"s_lshl_b32 s{sT3}, s{sS}, 9")
    E(f"s_add_u32 s{sOPs}, s{sOPs}, s{sT3}")
    E(f"s_add_u32 s{sOPs}, s{sOPs}, {hex(OPR)}")
    E(f"s_lshl_b32 s{sMLs}, s{sT2}, 12")
    E(f"s_lshl_b32 s{sT3}, s{sS}, 4")
    E(f"s_add_u32 s{sMLs}, s{sMLs}, s{sT3}")
    E(f"s_add_u32 s{sMLs}, s{sMLs}, {hex(ML)}")
    E(f"s_mov_b32 s{sPL}, 0x05040100"); E(f"s_mov_b32 s{sPH}, 0x07060302")
    E(f"s_mov_b32 s{sM2}, 0x00030003"); E(f"s_mov_b32 s{sM2+1}, 0x00030003")
    E(f"s_mov_b32 s{sM8}, 0x00ff00ff"); E(f"s_mov_b32 s{sM8+1}, 0x00ff00ff")
    E(f"s_mov_b32 s{sSC}, {hex(f2u(128**-0.5))}")
    E(f"s_mov_b32 s{sL2E}, {hex(f2u(1.4426950408889634))}")
    E(f"s_mov_b32 s{sHI}, 0xffff0000")
    E(f"s_mov_b32 s{sCA}, 0x0c0c0400"); E(f"s_mov_b32 s{sCB}, 0x04000c0c")
    srd(SO,24,4096); srd(SB1,18,7168); srd(SB2,22,2048)
    E(f"s_cmp_lt_u32 s2, 224")
    E(f"s_cselect_b32 s{SW2+2}, 0x700000, 0")
    E(f"s_cselect_b32 s{SB1+2}, 7168, 0")
    E(f"s_and_b32 s{sT2}, s{sW}, 3")
    E(f"s_lshl_b32 s{sT}, s{sS}, 18")
    E(f"s_lshl_b32 s{sT3}, s{sT2}, 16")
    E(f"s_add_u32 s{sT}, s{sT}, s{sT3}")
    E(f"s_and_b32 s{sT3}, s2, 7")
    E(f"s_lshl_b32 s{sT3}, s{sT3}, 8")
    E(f"s_add_u32 s{sT}, s{sT}, s{sT3}")
    E(f"s_lshr_b32 s{sWT}, s2, 1")
    E(f"s_lshl_b32 s{sWT}, s{sWT}, 16")
    E(f"s_and_b32 s{sT3}, s2, 1")
    E(f"s_lshl_b32 s{sT3}, s{sT3}, 10")
    E(f"s_add_u32 s{sWT}, s{sWT}, s{sT3}")
    E(f"s_lshl_b32 s{sT3}, s{sT2}, 8")
    E(f"s_add_u32 s{sWT}, s{sWT}, s{sT3}")
    E(f"s_cmp_lt_u32 s{sW}, 4")
    E(f"s_cselect_b32 s{SW2}, s12, s20")
    E(f"s_cselect_b32 s{SW2+1}, s13, s21")
    E(f"s_cselect_b32 s{SW2+2}, 0x800000, s{SW2+2}")
    E(f"s_cselect_b32 s{sWT}, s{sWT}, s{sT}")
    E(f"s_mov_b32 s{SW2+3}, 0x20000")
    E(f"v_lshlrev_b32 v{vW2}, 4, v{vN}")
    E(f"v_lshl_add_u32 v{vW2}, v{vG}, 12, v{vW2}")
    E(f"v_mov_b32 v{vFF}, 0xff")
    E(f"s_waitcnt vmcnt({9+4*KE})")
    for i in range(16):
        E(f"v_lshlrev_b32 v{D+2*i}, 16, v{T+i}")
        E(f"v_and_b32 v{D+2*i+1}, s{sHI}, v{T+i}")
    def allred_parity(r,t):
        for k in (2,4,8):
            E(f"v_add_f32_dpp v{r}, v{r}, v{r} row_ror:{k} row_mask:0xf bank_mask:0xf")
        for sw in ("v_permlane16_swap_b32","v_permlane32_swap_b32"):
            E(f"v_mov_b32 v{t}, v{r}")
            E(f"{sw} v{r}, v{t}")
            E(f"v_add_f32 v{r}, v{r}, v{t}")
    def tree_sum(src,n,tmp):
        for a in range(4): E(f"v_add_f32 v{tmp+a}, v{src+a}, v{src+4+a}")
        for i in range(8,n): E(f"v_add_f32 v{tmp+(i&3)}, v{tmp+(i&3)}, v{src+i}")
        E(f"v_add_f32 v{tmp}, v{tmp}, v{tmp+1}"); E(f"v_add_f32 v{tmp+2}, v{tmp+2}, v{tmp+3}")
        E(f"v_add_f32 v{tmp}, v{tmp}, v{tmp+2}")
    tree_sum(D,32,T)
    allred_parity(T,T+1)
    E(f"v_mul_f32 v{T+4}, {hex(f2u(1/1024))}, v{T}")
    for i in range(32): E(f"v_sub_f32 v{D+i}, v{D+i}, v{T+4}")
    for a in range(4): E(f"v_mul_f32 v{T+a}, v{D+a}, v{D+a}")
    for i in range(4,32): E(f"v_fmac_f32 v{T+(i&3)}, v{D+i}, v{D+i}")
    E(f"v_add_f32 v{T}, v{T}, v{T+1}"); E(f"v_add_f32 v{T+2}, v{T+2}, v{T+3}"); E(f"v_add_f32 v{T}, v{T}, v{T+2}")
    allred_parity(T,T+1)
    E(f"v_mul_f32 v{T}, {hex(f2u(1/1024))}, v{T}")
    E(f"v_cvt_pk_bf16_f32 v{T+1}, v{T+4}, v{T}")
    E(f"v_lshlrev_b32 v{T+4}, 16, v{T+1}")
    E(f"v_and_b32 v{T}, s{sHI}, v{T+1}")
    E(f"v_add_f32 v{T}, {hex(f2u(1e-5))}, v{T}")
    E(f"v_cvt_pk_bf16_f32 v{T}, v{T}, v{T}")
    E(f"v_and_b32 v{T}, s{sHI}, v{T}")
    E(f"v_sqrt_f32 v{T}, v{T}")
    E(f"v_cvt_pk_bf16_f32 v{T}, v{T}, v{T}")
    E(f"v_and_b32 v{T}, s{sHI}, v{T}")
    E(f"v_rcp_f32 v{T+1}, v{T}")
    E(f"s_waitcnt vmcnt({8+4*KE})")
    for i in range(4):
        E(f"v_lshlrev_b32 v{D+2*i}, 16, v{XF+i}")
        E(f"v_and_b32 v{D+2*i+1}, s{sHI}, v{XF+i}")
    for i in range(8): E(f"v_sub_f32 v{D+i}, v{D+i}, v{T+4}")
    for i in range(4): E(f"v_cvt_pk_bf16_f32 v{XF+i}, v{D+2*i}, v{D+2*i+1}")
    for i in range(4):
        E(f"v_lshlrev_b32 v{D+2*i}, 16, v{XF+i}")
        E(f"v_and_b32 v{D+2*i+1}, s{sHI}, v{XF+i}")
    for i in range(8): E(f"v_mul_f32 v{D+8+i}, v{D+i}, v{T+1}")
    for i in range(8): E(f"v_fma_f32 v{D+i}, -v{D+8+i}, v{T}, v{D+i}")
    for i in range(8): E(f"v_fmac_f32 v{D+8+i}, v{D+i}, v{T+1}")
    for i in range(4): E(f"v_cvt_pk_bf16_f32 v{XF+i}, v{D+8+2*i}, v{D+8+2*i+1}")
    stamp(1)
    def perms(R,e,dst):
        w=e>>1; sel=sPH if e&1 else sPL
        for u in range(4):
            E(f"v_perm_b32 v{dst+u}, v{R+4*(2*u+1)+w}, v{R+4*(2*u)+w}, s{sel}")
    def tile_mm(R, order, mm):
        for idx,e in enumerate(order):
            perms(R,e,T+4*(idx&3))
            if idx>0: mm(order[idx-1],T+4*((idx-1)&3))
        mm(order[-1],T+4*((len(order)-1)&3))
    def gemv_addr():
        E(f"v_lshlrev_b32 v29, 9, v{vN}")
        E(f"v_lshl_add_u32 v29, v{vG}, 7, v29")
        E(f"s_lshl_b32 s{sT}, s{sW}, 10")
        E(f"v_add_u32 v29, s{sT}, v29")
    gemv_addr()
    E(f"s_waitcnt vmcnt({4*KE})")
    stamp(2)
    if KE<2: kload(KE,2)
    tile_mm(X, list(range(8)), lambda e,a: E(f"v_mfma_f32_16x16x32_bf16 {vr(D+4*e)}, {vr(a)}, {vr(XF)}, 0"))
    def gemv_to_lds():
        E(f"s_mov_b64 exec, s[{sM2}:{sM2+1}]")
        for e in range(8): E(f"ds_write_b128 v29, {vr(D+4*e)} offset:{WP+16*e}")
        E("s_mov_b64 exec, -1")
    gemv_to_lds()
    E(f"s_cmp_lg_u32 s{sW}, 7")
    E("s_cbranch_scc1 L_B1")
    E("s_mov_b64 exec, 1")
    E("v_mov_b32 v29, 0")
    E(f"ds_write_b32 v29, v30 offset:{TGB}")
    E("s_mov_b64 exec, -1")
    E("L_B1:")
    E("s_waitcnt lgkmcnt(0)")
    E("s_barrier")
    stamp(3)
    E("v_mov_b32 v29, 0")
    E(f"ds_read_b32 v30, v29 offset:{TGB}")
    def gettag():
        E(f"v_readfirstlane_b32 s{sEp}, v30")
        E(f"s_add_u32 s{sEp}, s{sEp}, 1")
        E(f"s_mul_i32 s{sTag}, s{sEp}, 0x9e3779b1")
        E(f"s_lshr_b32 s{sTg1}, s{sTag}, 8"); E(f"s_lshr_b32 s{sTg2}, s{sTag}, 16"); E(f"s_lshr_b32 s{sTg3}, s{sTag}, 24")
    E(f"s_cmp_ge_u32 s{sW}, 4")
    E("s_cbranch_scc1 L_SVC")
    E(f"s_cmp_lg_u32 s{sW}, 0")
    E("s_cbranch_scc1 L_A1")
    R=D
    for w in range(8): E(f"ds_read_b128 {vr(R+4*w)}, v{vV} offset:{WP+1024*w}")
    E("s_waitcnt lgkmcnt(8)")
    gettag()
    E("s_waitcnt lgkmcnt(0)")
    for st in (16,8,4):
        for i in range(0,st,2): E(f"v_pk_add_f32 {vr(R+i,2)}, {vr(R+i,2)}, {vr(R+st+i,2)}")
    tagit(R)
    E(f"s_lshl_b32 s{sT}, s2, 10")
    E(f"buffer_store_dwordx4 {vr(R)}, v{vV}, {sr(SWS)}, s{sT} offen sc1")
    E("L_A1:")
    kload(2,8); vload(0,V0); vload(1,X)
    E("s_waitcnt lgkmcnt(0)")
    gettag()
    stamp(4)
    E("s_barrier")
    stamp(6)
    E("s_branch L_QK")
    E("L_SVC:")
    prio(3)
    E("v_lshrrev_b32 v28, 5, v0")
    E("v_and_b32 v29, 31, v0")
    E("v_lshlrev_b32 v27, 12, v28")
    E("v_lshl_add_u32 v27, v29, 4, v27")
    E(f"s_and_b32 s{sT}, s2, 3")
    E(f"s_lshl_b32 s{sFin}, s{sT}, 15")
    E(f"s_lshr_b32 s{sT2}, s2, 2")
    E(f"s_and_b32 s{sT2}, s{sT2}, 1")
    E(f"s_lshl_b32 s{sT2}, s{sT2}, 9")
    E(f"s_add_u32 s{sFin}, s{sFin}, s{sT2}")
    E(f"s_and_b32 s{sT2}, s{sW}, 3")
    E(f"s_lshl_b32 s{sT3}, s{sT2}, 13")
    E(f"s_add_u32 s{sFin}, s{sFin}, s{sT3}")
    QG=V0
    def qloads():
        for ks in range(4):
            E(f"buffer_load_dwordx4 {vr(QG+4*ks)}, v27, {sr(SWS)}, s{sFin} offen offset:{1024*ks} sc1")
    QF=opt.get("qfirst",0)
    KF=4
    if QF: kload(2,2+QF)
    qloads()
    kload(2+QF,KF)
    E("v_mul_u32_u24 v28, 272, v28")
    E("v_lshrrev_b32 v26, 3, v29")
    E("v_lshl_add_u32 v28, v26, 6, v28")
    E("v_and_b32 v26, 7, v29")
    E("v_lshl_add_u32 v28, v26, 1, v28")
    E(f"s_mul_i32 s{sT3}, s{sT2}, 544")
    E(f"v_add_u32 v28, s{sT3}, v28")
    E("s_waitcnt lgkmcnt(0)")
    gettag()
    E(f"s_mov_b32 s{sCnt}, 0")
    E(f"s_waitcnt vmcnt({4*(KF-2-QF)})")
    stamp(4)
    E("L_POLL0:")
    tagchk([QG+4*i for i in range(4)],T)
    E("s_cbranch_vccz L_POLL0_DONE")
    E(f"s_add_u32 s{sCnt}, s{sCnt}, 1")
    E(f"s_cmp_gt_u32 s{sCnt}, 0x20000")
    E("s_cbranch_scc1 L_POLL0_DONE")
    qloads()
    E("s_waitcnt vmcnt(0)")
    E("s_branch L_POLL0")
    E("L_POLL0_DONE:")
    stamp(5)
    b=QG
    for i in (0,2): E(f"v_pk_add_f32 {vr(b+i,2)}, {vr(b+i,2)}, {vr(b+4+i,2)}")
    for i in (0,2): E(f"v_pk_add_f32 {vr(b+8+i,2)}, {vr(b+8+i,2)}, {vr(b+12+i,2)}")
    for i in (0,2): E(f"v_pk_add_f32 {vr(b+i,2)}, {vr(b+i,2)}, {vr(b+8+i,2)}")
    E(f"v_cvt_pk_bf16_f32 v{b}, v{b}, v{b+1}")
    E(f"v_cvt_pk_bf16_f32 v{b+1}, v{b+2}, v{b+3}")
    E(f"ds_write_b16 v28, v{b} offset:{QB}")
    E(f"ds_write_b16_d16_hi v28, v{b} offset:{QB+16}")
    E(f"ds_write_b16 v28, v{b+1} offset:{QB+32}")
    E(f"ds_write_b16_d16_hi v28, v{b+1} offset:{QB+48}")
    E("s_waitcnt lgkmcnt(0)")
    KB2=opt.get("kb2",0)
    if KB2: kload(KF,8); vload(0,V0); vload(1,X)
    E("s_barrier")
    stamp(6)
    if not KB2: kload(KF,8); vload(0,V0); vload(1,X)
    E("L_QK:")
    stamp(7)
    E(f"v_and_b32 v28, 7, v0")
    E("v_mul_u32_u24 v28, 272, v28")
    E(f"v_lshl_add_u32 v28, v{vG}, 4, v28")
    for kk in range(4): E(f"ds_read_b128 {vr(T+4*kk)}, v28 offset:{QB+64*kk}")
    E("s_waitcnt lgkmcnt(0)")
    waits=[40,32,24,16]
    for p in range(4):
        E(f"s_waitcnt vmcnt({waits[p]})")
        for kk in range(4):
            for t in (2*p,2*p+1):
                c="0" if kk==0 else vr(D+4*t)
                E(f"v_mfma_f32_16x16x32_bf16 {vr(D+4*t)}, {vr(KR+16*t+4*kk)}, {vr(T+4*kk)}, {c}")
    stamp(8)
    for rnd in range(2):
        for i in range(16): E(f"v_cvt_pk_bf16_f32 v{T+i}, v{D+2*i}, v{D+2*i+1}")
        for i in range(16):
            E(f"v_lshlrev_b32 v{D+2*i}, 16, v{T+i}")
            E(f"v_and_b32 v{D+2*i+1}, s{sHI}, v{T+i}")
        if rnd==0:
            for i in range(0,32,2): E(f"v_pk_mul_f32 {vr(D+i,2)}, {vr(D+i,2)}, s[{sSC}:{sSC+1}] op_sel_hi:[1,0]")
    for a in range(4): E(f"v_max3_f32 v{T+a}, v{D+a}, v{D+4+a}, v{D+8+a}")
    for i in range(12,28,8):
        for a in range(4): E(f"v_max3_f32 v{T+a}, v{T+a}, v{D+i+a}, v{D+i+4+a}")
    for a in range(4): E(f"v_max_f32 v{T+a}, v{T+a}, v{D+28+a}")
    E(f"v_max3_f32 v{T}, v{T}, v{T+1}, v{T+2}"); E(f"v_max_f32 v{T}, v{T}, v{T+3}")
    def allred_g(r,t,op):
        for sw in ("v_permlane16_swap_b32","v_permlane32_swap_b32"):
            E(f"v_mov_b32 v{t}, v{r}")
            E(f"{sw} v{r}, v{t}")
            E(f"{op} v{r}, v{r}, v{t}")
    allred_g(T,T+1,"v_max_f32")
    E("v_and_b32 v28, 7, v0")
    E("v_lshlrev_b32 v28, 5, v28")
    E(f"s_lshl_b32 s{sT}, s{sW}, 2")
    E(f"v_add_u32 v29, s{sT}, v28")
    E("s_mov_b64 exec, 0xff")
    E(f"ds_write_b32 v29, v{T} offset:{MXB}")
    E("s_mov_b64 exec, -1")
    E("s_waitcnt lgkmcnt(0)")
    E("s_barrier")
    stamp(9)
    E(f"ds_read_b128 {vr(T)}, v28 offset:{MXB}")
    E(f"ds_read_b128 {vr(T+4)}, v28 offset:{MXB+16}")
    E("s_waitcnt lgkmcnt(0)")
    E(f"v_max3_f32 v{T}, v{T}, v{T+1}, v{T+2}"); E(f"v_max3_f32 v{T+4}, v{T+4}, v{T+5}, v{T+6}")
    E(f"v_max3_f32 v{T}, v{T}, v{T+3}, v{T+7}"); E(f"v_max_f32 v{T}, v{T}, v{T+4}")
    E(f"v_mul_f32 v{vM}, s{sL2E}, v{T}")
    for i in range(32): E(f"v_fma_f32 v{D+i}, v{D+i}, s{sL2E}, -v{vM}")
    for i in range(32): E(f"v_exp_f32 v{D+i}, v{D+i}")
    tree_sum(D,32,T)
    allred_g(T,T+1,"v_add_f32")
    E("s_mov_b64 exec, 0xff")
    E(f"ds_write_b32 v29, v{T} offset:{LSB}")
    E("s_mov_b64 exec, -1")
    E("s_waitcnt lgkmcnt(0)")
    E("s_barrier")
    stamp(10)
    E(f"s_cmp_lt_u32 s{sW}, 4")
    E("s_cbranch_scc1 L_AV")
    E(f"s_cmp_lg_u32 s{sW}, 4")
    E("s_cbranch_scc1 L_BX")
    E(f"ds_read_b128 {vr(T)}, v28 offset:{LSB}")
    E(f"ds_read_b128 {vr(T+4)}, v28 offset:{LSB+16}")
    E("v_lshlrev_b32 v28, 4, v28")
    E(f"v_mov_b32 v{T+8}, v{vM}")
    E(f"v_mov_b32 v{T+10}, s{sTag}")
    E(f"v_mov_b32 v{T+11}, s{sTag}")
    E("s_waitcnt lgkmcnt(0)")
    E(f"v_pk_add_f32 {vr(T,2)}, {vr(T,2)}, {vr(T+2,2)}")
    E(f"v_pk_add_f32 {vr(T+4,2)}, {vr(T+4,2)}, {vr(T+6,2)}")
    E(f"v_pk_add_f32 {vr(T,2)}, {vr(T,2)}, {vr(T+4,2)}")
    E(f"v_add_f32 v{T+9}, v{T}, v{T+1}")
    E("s_mov_b64 exec, 0xff")
    E(f"buffer_store_dwordx4 {vr(T+8)}, v28, {sr(SWS)}, s{sMLs} offen sc1")
    E("s_mov_b64 exec, -1")
    E("L_BX:")
    E(f"v_lshrrev_b32 v30, 1, v{vN}")
    E("v_and_b32 v30, 3, v30")
    E("v_lshlrev_b32 v30, 10, v30")
    E("v_and_b32 v27, 1, v0")
    E("v_lshl_add_u32 v30, v27, 9, v30")
    E(f"v_lshl_add_u32 v30, v{vG}, 5, v30")
    E(f"s_lshl_b32 s{sMLs}, s{sS}, 12")
    E(f"s_and_b32 s{sT2}, s{sW}, 3")
    E(f"s_lshl_b32 s{sT3}, s{sT2}, 7")
    E(f"s_add_u32 s{sMLs}, s{sMLs}, s{sT3}")
    E(f"s_add_u32 s{sMLs}, s{sMLs}, 0x20000")
    def hloads():
        E(f"buffer_load_dwordx4 {vr(HX)}, v30, {sr(SWS)}, s{sMLs} offen sc1")
        E(f"buffer_load_dwordx4 {vr(HX+4)}, v30, {sr(SWS)}, s{sMLs} offen offset:16 sc1")
    hloads()
    E(f"s_lshl_b32 s{sT}, s{sS}, 8")
    E(f"s_lshl_b32 s{sT3}, s{sT2}, 6")
    E(f"s_add_u32 s{sT}, s{sT}, s{sT3}")
    E(f"v_lshlrev_b32 v27, 2, v{vG}")
    for r in range(4): E(f"buffer_load_dword v{B1R+r}, v27, {sr(SB1)}, s{sT} offen offset:{16*r}")
    E("v_bfe_u32 v26, v0, 3, 1")
    E("v_lshlrev_b32 v26, 5, v26")
    E("v_and_b32 v27, 16, v0")
    E("v_or_b32 v26, v26, v27")
    E("v_and_b32 v27, 1, v0")
    E("v_lshl_add_u32 v158, v27, 1, v26")
    E(f"s_and_b32 s{sT}, s2, 7")
    E(f"s_lshl_b32 s{sT}, s{sT}, 8")
    E(f"s_lshr_b32 s{sT3}, s{sS}, 2")
    E(f"s_and_b32 s{sT3}, s{sT3}, 3")
    E(f"s_lshl_b32 s{sT3}, s{sT3}, 6")
    E(f"s_add_u32 s{sT}, s{sT}, s{sT3}")
    E(f"s_and_b32 s{sT3}, s{sS}, 3")
    E(f"s_lshl_b32 s{sT3}, s{sT3}, 2")
    E(f"s_add_u32 s{sT}, s{sT}, s{sT3}")
    E(f"s_lshr_b32 s{sT3}, s{sS}, 4")
    E(f"s_lshl_b32 s{sT3}, s{sT3}, 11")
    E(f"s_add_u32 s{sFin}, s{sT}, s{sT3}")
    E(f"buffer_load_ushort v{B2F}, v158, {sr(SB2)}, s{sT} offen")
    vload(2,KR); vload(3,KR+32)
    prio(1)
    E("s_branch L_PV")
    E("L_AV:")
    prio(2)
    vload(2,KR); vload(3,KR+32)
    prio(0)
    E("v_lshrrev_b32 v30, 5, v0")
    E("v_lshlrev_b32 v30, 14, v30")
    E("v_and_b32 v27, 31, v0")
    E("v_lshl_add_u32 v30, v27, 4, v30")
    E(f"s_lshl_b32 s{sMLs}, s{sS}, 9")
    E(f"s_add_u32 s{sMLs}, s{sMLs}, {hex(ML)}")
    E("L_PV:")
    stamp(11)
    for u in range(4):
        b=D+8*u
        for i in range(4): E(f"v_cvt_pk_bf16_f32 v{b+i}, v{b+2*i}, v{b+2*i+1}")
        for i in range(4): E(f"v_cndmask_b32 v{b+4+i}, v{b+i}, 0, s[{sM8}:{sM8+1}]")
        for i in range(4): E(f"v_cndmask_b32 v{b+i}, 0, v{b+i}, s[{sM8}:{sM8+1}]")
    MLR=X
    vb=[V0,X,KR,KR+32]
    WPOS=opt.get("wpos",2)
    vw=[24,16,8,9] if WPOS==2 else [24,16,17,9]
    order=[0,2,4,6,1,3,5,7]
    def tail_loads():
        E(f"s_cmp_lt_u32 s{sW}, 4")
        E("s_cbranch_scc1 L_TL_A")
        E(f"buffer_load_ushort v{XFN}, v158, {sr(SX)}, s{sFin} offen")
        E("s_branch L_TL_B")
        E("L_TL_A:")
        E(f"buffer_load_dwordx4 {vr(MLR)}, v30, {sr(SWS)}, s{sMLs} offen sc1")
        E("L_TL_B:")
        for j in range(8):
            off=(8*(j&3)+(j>>2))*2048
            E(f"s_add_u32 s{sT3}, s{sWT}, {off&~4095}")
            E(f"buffer_load_dwordx4 {vr(WT+4*j)}, v{vW2}, {sr(SW2)}, s{sT3} offen offset:{off&4095} {NTW}")
    for u in range(4):
        if u==3:
            E(f"v_mul_u32_u24 v28, 20, v{vG}")
            E(f"v_add_lshl_u32 v28, v28, v{vN}, 4")
            E(f"s_mul_i32 s{sT}, s{sW}, {OPW}")
            E(f"v_add_u32 v28, s{sT}, v28")
        E(f"s_waitcnt vmcnt({vw[u]})")
        if u==3: stamp(15); prio(3)
        def mm(e,a,u=u):
            c="0" if (u==0 and e%2==0) else vr(ACC+4*(e>>1))
            E(f"v_mfma_f32_16x16x32_bf16 {vr(ACC+4*(e>>1))}, {vr(a)}, {vr(D+8*u+4*(e&1))}, {c}")
        tile_mm(vb[u],order,mm)
        if u==1: stamp(12)
        if u==WPOS:
            stamp(13); tail_loads(); stamp(14)
    for q in range(4): E(f"ds_write_b128 v28, {vr(ACC+4*q)} offset:{OPB+q*SA}")
    E("s_waitcnt lgkmcnt(0)")
    E("s_barrier")
    stamp(16)
    E(f"s_cmp_ge_u32 s{sW}, 4")
    E("s_cbranch_scc1 L_W2")
    E("v_and_b32 v28, 7, v0")
    E("v_lshrrev_b32 v29, 1, v28")
    E("v_mul_u32_u24 v29, 81, v29")
    E("v_and_b32 v28, 1, v0")
    E("v_lshl_add_u32 v29, v28, 3, v29")
    E("v_bfe_u32 v28, v0, 3, 2")
    E("v_mul_u32_u24 v28, 20, v28")
    E("v_add_u32 v29, v28, v29")
    E("v_lshrrev_b32 v28, 5, v0")
    E("v_add_u32 v29, v28, v29")
    E(f"s_lshl_b32 s{sT}, s{sW}, 1")
    E(f"v_add_lshl_u32 v29, v29, s{sT}, 4")
    for w in range(8): E(f"ds_read_b128 {vr(V0+4*w)}, v29 offset:{OPB+OPW*w}")
    E("v_lshlrev_b32 v28, 14, v28")
    E("v_and_b32 v29, 31, v0")
    E("v_lshl_add_u32 v28, v29, 4, v28")
    E(f"s_lshl_b32 s{sT}, s{sW}, 15")
    E(f"s_add_u32 s{sT}, s{sT}, s{sOPs}")
    E("v_lshrrev_b32 v26, 3, v0")
    E("v_lshlrev_b32 v26, 9, v26")
    E("v_and_b32 v27, 7, v0")
    E("v_lshl_add_u32 v26, v27, 4, v26")
    E(f"s_lshl_b32 s{sFin}, s{sS}, 14")
    E(f"s_lshl_b32 s{sT2}, s{sW}, 12")
    E(f"s_add_u32 s{sFin}, s{sFin}, s{sT2}")
    E(f"s_lshr_b32 s{sT2}, s2, 1")
    E(f"s_and_b32 s{sT2}, s{sT2}, 3")
    E(f"s_lshl_b32 s{sT2}, s{sT2}, 7")
    E(f"s_add_u32 s{sFin}, s{sFin}, s{sT2}")
    E(f"s_add_u32 s{sFin}, s{sFin}, {hex(OPR)}")
    E(f"s_add_u32 s{sT2}, s{sFin}, 0x80000")
    E("s_waitcnt lgkmcnt(0)")
    for st in (16,8,4):
        for i in range(0,st,2): E(f"v_pk_add_f32 {vr(V0+i,2)}, {vr(V0+i,2)}, {vr(V0+st+i,2)}")
    tagit(V0)
    E(f"buffer_store_dwordx4 {vr(V0)}, v28, {sr(SWS)}, s{sT} offen sc1")
    stamp(17)
    G=X+8; WG=X+4
    def hop1_loads():
        E(f"buffer_load_dwordx4 {vr(G)}, v26, {sr(SWS)}, s{sFin} offen sc1")
        E(f"buffer_load_dwordx4 {vr(G+4)}, v26, {sr(SWS)}, s{sT2} offen sc1")
    hop1_loads()
    E(f"s_mov_b32 s{sCnt}, 0")
    E("s_waitcnt vmcnt(11)")
    E("L_POLLM:")
    E(f"v_cmp_ne_u32 vcc, s{sTag}, v{MLR+2}")
    E("s_cbranch_vccz L_POLLM_DONE")
    E(f"s_add_u32 s{sCnt}, s{sCnt}, 1")
    E(f"s_cmp_gt_u32 s{sCnt}, 0x20000")
    E("s_cbranch_scc1 L_POLLM_DONE")
    E(f"buffer_load_dwordx4 {vr(MLR)}, v30, {sr(SWS)}, s{sMLs} offen sc1")
    E("s_waitcnt vmcnt(0)")
    E("s_branch L_POLLM")
    E("L_POLLM_DONE:")
    def allred32(r,t,op):
        for k in (1,2,4,8): E(f"{op}_dpp v{r}, v{r}, v{r} row_ror:{k} row_mask:0xf bank_mask:0xf")
        E(f"v_mov_b32 v{t}, v{r}")
        E(f"v_permlane16_swap_b32 v{r}, v{t}")
        E(f"{op} v{r}, v{r}, v{t}")
    E(f"v_mov_b32 v{T}, v{MLR}")
    allred32(T,T+1,"v_max_f32")
    E(f"v_sub_f32 v{MLR}, v{MLR}, v{T}")
    E(f"v_exp_f32 v{MLR}, v{MLR}")
    E(f"v_mul_f32 v{T}, v{MLR}, v{MLR+1}")
    allred32(T,T+1,"v_add_f32")
    E(f"v_rcp_f32 v{T}, v{T}")
    E(f"v_mul_f32 v{MLR}, v{MLR}, v{T}")
    E("v_lshrrev_b32 v28, 3, v0")
    E(f"s_lshl_b32 s{sT}, s{sW}, 3")
    E(f"v_add_lshl_u32 v28, v28, s{sT}, 2")
    E(f"ds_bpermute_b32 v{WG}, v28, v{MLR}")
    E(f"ds_bpermute_b32 v{WG+1}, v28, v{MLR} offset:128")
    for i in range(0,32,2): E(f"v_mov_b64 {vr(D+i,2)}, 0")
    E("v_bfe_u32 v28, v0, 3, 1")
    E("v_lshlrev_b32 v28, 1, v28")
    E("v_bfe_u32 v29, v0, 4, 1")
    E("v_add_u32 v28, v28, v29")
    E("v_and_b32 v29, 1, v0")
    E("v_lshl_add_u32 v28, v29, 2, v28")
    E("v_bfe_u32 v29, v0, 1, 2")
    E("v_lshl_add_u32 v28, v29, 3, v28")
    E("v_lshrrev_b32 v29, 5, v0")
    E("v_lshl_add_u32 v28, v29, 5, v28")
    E(f"s_lshl_b32 s{sT}, s{sW}, 6")
    E(f"v_add_lshl_u32 v28, v28, s{sT}, 2")
    E("v_and_b32 v29, 1, v0")
    E("v_lshlrev_b32 v29, 7, v29")
    E(f"v_lshl_add_u32 v29, v{vG}, 5, v29")
    E("v_and_b32 v23, 1, v0")
    E("v_lshlrev_b32 v23, 9, v23")
    E(f"v_lshl_add_u32 v23, v{vG}, 7, v23")
    E(f"v_lshrrev_b32 v22, 1, v{vN}")
    E("v_lshl_add_u32 v23, v22, 4, v23")
    E(f"s_lshl_b32 s{sOPs}, s2, 12")
    E(f"s_lshl_b32 s{sT}, s{sW}, 10")
    E(f"s_add_u32 s{sOPs}, s{sOPs}, s{sT}")
    E(f"s_add_u32 s{sOPs}, s{sOPs}, {hex(FPA)}")
    E("s_mov_b32 s98, 0xff00ff00"); E("s_mov_b32 s99, 0xff00ff00")
    E("s_waitcnt vmcnt(3)")
    stamp(18)
    for e in range(8): perms(WT,e,KR+4*e)
    E(f"s_mov_b32 s{sCnt}, 0")
    E("L_POLL1:")
    E("s_waitcnt vmcnt(0) lgkmcnt(0)")
    tagchk([G,G+4],T)
    E("s_cbranch_vccz L_POLL1_DONE")
    E(f"s_add_u32 s{sCnt}, s{sCnt}, 1")
    E(f"s_cmp_gt_u32 s{sCnt}, 0x40000")
    E("s_cbranch_scc1 L_POLL1_DONE")
    hop1_loads()
    E("s_branch L_POLL1")
    E("L_POLL1_DONE:")
    stamp(19)
    for bb in range(2):
        for i in (0,2): E(f"v_pk_mul_f32 {vr(G+4*bb+i,2)}, {vr(G+4*bb+i,2)}, {vr(WG,2)} op_sel:[0,{bb}] op_sel_hi:[1,{bb}]")
    for r in range(4): E(f"v_permlane32_swap_b32 v{G+r}, v{G+4+r}")
    for i in (0,2): E(f"v_pk_add_f32 {vr(G+i,2)}, {vr(G+i,2)}, {vr(G+4+i,2)}")
    E(f"v_permlane16_swap_b32 v{G}, v{G+1}")
    E(f"v_permlane16_swap_b32 v{G+2}, v{G+3}")
    E(f"v_add_f32 v{G}, v{G}, v{G+1}")
    E(f"v_add_f32 v{G+2}, v{G+2}, v{G+3}")
    E(f"v_add_f32_dpp v{G}, v{G}, v{G} row_ror:8 row_mask:0xf bank_mask:0xf")
    E(f"v_add_f32_dpp v{G+2}, v{G+2}, v{G+2} row_ror:8 row_mask:0xf bank_mask:0xf")
    E(f"v_cndmask_b32 v{G}, v{G}, v{G+2}, s[98:99]")
    E(f"ds_write_b32 v28, v{G} offset:{XB}")
    E("s_waitcnt lgkmcnt(0)")
    E("s_barrier")
    stamp(20)
    for w in range(4):
        for h in range(2): E(f"ds_read_b128 {vr(V0+8*w+4*h)}, v29 offset:{XB+256*w+16*h}")
    E("s_waitcnt lgkmcnt(4)")
    for i in range(0,8,2): E(f"v_pk_add_f32 {vr(V0+i,2)}, {vr(V0+i,2)}, {vr(V0+8+i,2)}")
    E("s_waitcnt lgkmcnt(0)")
    for i in range(0,8,2): E(f"v_pk_add_f32 {vr(V0+16+i,2)}, {vr(V0+16+i,2)}, {vr(V0+24+i,2)}")
    for i in range(0,8,2): E(f"v_pk_add_f32 {vr(V0+i,2)}, {vr(V0+i,2)}, {vr(V0+16+i,2)}")
    for i in range(4): E(f"v_cvt_pk_bf16_f32 v{XF+i}, v{V0+2*i}, v{V0+2*i+1}")
    for e in range(8):
        E(f"s_lshl_b64 exec, s[{sM2}:{sM2+1}], {2*e}")
        E(f"v_mov_b64 {vr(D+4*e,2)}, {vr(XF,2)}")
        E(f"v_mov_b64 {vr(D+4*e+2,2)}, {vr(XF+2,2)}")
    E("s_mov_b64 exec, -1")
    for e in range(8):
        a=ACC+4*(e&1)
        E(f"v_mfma_f32_16x16x32_bf16 {vr(a)}, {vr(KR+4*e)}, {vr(D+4*e)}, {'0' if e<2 else vr(a)}")
    for i in (0,2): E(f"v_pk_add_f32 {vr(ACC+i,2)}, {vr(ACC+i,2)}, {vr(ACC+4+i,2)}")
    tagit(ACC)
    E(f"buffer_store_dwordx4 {vr(ACC)}, v23, {sr(SWS)}, s{sOPs} offen sc1")
    stamp(21)
    E("s_branch L_DONE")
    E("L_W2:")
    prio(1)
    E(f"s_mov_b32 s{sCnt}, 0")
    E("L_POLLH:")
    tagchk([HX,HX+4],T)
    E("s_cbranch_vccz L_POLLH_DONE")
    E(f"s_add_u32 s{sCnt}, s{sCnt}, 1")
    E(f"s_cmp_gt_u32 s{sCnt}, 0x20000")
    E("s_cbranch_scc1 L_POLLH_DONE")
    hloads()
    E("s_waitcnt vmcnt(0)")
    E("s_branch L_POLLH")
    E("L_POLLH_DONE:")
    for k in (2,4):
        for i in range(8): E(f"v_add_f32_dpp v{HX+i}, v{HX+i}, v{HX+i} row_ror:{k} row_mask:0xf bank_mask:0xf")
    for i in range(4): E(f"v_cvt_pk_bf16_f32 v{T+i}, v{HX+i}, v{HX+4+i}")
    for i in range(4):
        E(f"v_lshlrev_b32 v{HX+i}, 16, v{T+i}"); E(f"v_and_b32 v{HX+4+i}, s{sHI}, v{T+i}")
        E(f"v_lshlrev_b32 v{T+4+i}, 16, v{B1R+i}"); E(f"v_and_b32 v{T+8+i}, s{sHI}, v{B1R+i}")
    for i in range(8): E(f"v_add_f32 v{HX+i}, v{HX+i}, v{T+4+i}")
    for i in range(4): E(f"v_cvt_pk_bf16_f32 v{T+i}, v{HX+i}, v{HX+4+i}")
    for i in range(4):
        E(f"v_lshlrev_b32 v{HX+i}, 16, v{T+i}"); E(f"v_and_b32 v{HX+4+i}, s{sHI}, v{T+i}")
    for i in range(8): E(f"v_cmp_gt_f32 vcc, v{HX+i}, 0") or E(f"v_cndmask_b32 v{HX+i}, 0, v{HX+i}, vcc")
    for i in range(8): E(f"v_mul_f32 v{HX+i}, v{HX+i}, v{HX+i}")
    for i in range(4): E(f"v_cvt_pk_bf16_f32 v{XF+i}, v{HX+2*i}, v{HX+2*i+1}")
    gemv_addr()
    E("s_waitcnt vmcnt(0)")
    stamp(17)
    tile_mm(WT, list(range(8)), lambda e,a: E(f"v_mfma_f32_16x16x32_bf16 {vr(D+4*e)}, {vr(a)}, {vr(XF)}, 0"))
    gemv_to_lds()
    E("v_lshrrev_b32 v28, 1, v0")
    E("v_lshlrev_b32 v28, 13, v28")
    E("v_and_b32 v29, 1, v0")
    E("v_lshl_add_u32 v28, v29, 4, v28")
    E(f"s_and_b32 s{sT}, s2, 7")
    E(f"s_lshl_b32 s{sT}, s{sT}, 10")
    E(f"s_lshl_b32 s{sT2}, s{sS}, 5")
    E(f"s_add_u32 s{sT}, s{sT}, s{sT2}")
    E(f"s_add_u32 s{sT2}, s{sT}, {hex(FPB)}")
    E(f"s_add_u32 s{sT}, s{sT}, {hex(FPA)}")
    E(f"s_add_u32 s{sT3}, s{sT}, 0x40000")
    E(f"s_add_u32 s{sOPs}, s{sT}, 0x80000")
    E(f"s_add_u32 s{sMLs}, s{sT}, 0xc0000")
    E(f"s_mov_b32 s{sCnt}, 0")
    E(f"v_lshlrev_b32 v{XFN}, 16, v{XFN}")
    E(f"v_lshlrev_b32 v{B2F}, 16, v{B2F}")
    E("s_mov_b32 s98, 0xff00ff00"); E("s_mov_b32 s99, 0xff00ff00")
    E("s_waitcnt lgkmcnt(0)")
    stamp(19)
    E("s_barrier")
    stamp(20)
    E(f"s_cmp_eq_u32 s{sW}, 7")
    E("s_cbranch_scc1 L_FIN")
    E(f"s_cmp_lg_u32 s{sW}, 4")
    E("s_cbranch_scc1 L_DONE")
    for w in range(4): E(f"ds_read_b128 {vr(V0+4*w)}, v{vV} offset:{WP+4096+1024*w}")
    E(f"s_lshl_b32 s{sT2}, s2, 10")
    E(f"s_add_u32 s{sT2}, s{sT2}, {hex(FPB)}")
    E("s_waitcnt lgkmcnt(0)")
    for st in (8,4):
        for i in range(0,st,2): E(f"v_pk_add_f32 {vr(V0+i,2)}, {vr(V0+i,2)}, {vr(V0+st+i,2)}")
    tagit(V0)
    E(f"buffer_store_dwordx4 {vr(V0)}, v{vV}, {sr(SWS)}, s{sT2} offen sc1")
    stamp(21)
    E("s_branch L_DONE")
    E("L_FIN:")
    E("L_POLL2:")
    for i,so in enumerate((sT,sT3,sOPs,sMLs,sT2)):
        E(f"buffer_load_dwordx4 {vr(V0+4*i)}, v28, {sr(SWS)}, s{so} offen sc1")
    E(f"s_add_u32 s{sCnt}, s{sCnt}, 1")
    E("s_waitcnt vmcnt(0)")
    tagchk([V0+4*i for i in range(5)],T)
    E(f"s_cmp_gt_u32 s{sCnt}, 0x40000")
    E("s_cbranch_scc1 L_POLL2_DONE")
    E("s_cbranch_vccnz L_POLL2")
    E("L_POLL2_DONE:")
    stamp(21)
    for i in (0,2): E(f"v_pk_add_f32 {vr(V0+i,2)}, {vr(V0+i,2)}, {vr(V0+4+i,2)}")
    for i in (0,2): E(f"v_pk_add_f32 {vr(V0+8+i,2)}, {vr(V0+8+i,2)}, {vr(V0+12+i,2)}")
    for i in (0,2): E(f"v_pk_add_f32 {vr(V0+i,2)}, {vr(V0+i,2)}, {vr(V0+8+i,2)}")
    for r in range(4): E(f"v_permlane32_swap_b32 v{V0+r}, v{V0+16+r}")
    for i in (0,2): E(f"v_pk_add_f32 {vr(V0+i,2)}, {vr(V0+i,2)}, {vr(V0+16+i,2)}")
    E(f"v_permlane16_swap_b32 v{V0}, v{V0+1}")
    E(f"v_permlane16_swap_b32 v{V0+2}, v{V0+3}")
    E(f"v_add_f32 v{V0}, v{V0}, v{V0+1}")
    E(f"v_add_f32 v{V0+2}, v{V0+2}, v{V0+3}")
    for k in (2,4,8):
        for i in (0,2): E(f"v_add_f32_dpp v{V0+i}, v{V0+i}, v{V0+i} row_ror:{k} row_mask:0xf bank_mask:0xf")
    E(f"v_cndmask_b32 v{V0}, v{V0}, v{V0+2}, s[98:99]")
    E(f"v_mov_b32 v{V0+1}, v{V0}")
    E(f"v_permlane32_swap_b32 v{V0}, v{V0+1}")
    E(f"v_cvt_pk_bf16_f32 v{V0+2}, v{V0}, v{V0+1}")
    E(f"v_lshlrev_b32 v{V0}, 16, v{V0+2}")
    E(f"v_and_b32 v{V0+1}, s{sHI}, v{V0+2}")
    E(f"v_add_f32 v{V0}, v{XFN}, v{V0}")
    E(f"v_add_f32 v{V0+1}, v{V0+1}, v{B2F}")
    E(f"v_cvt_pk_bf16_f32 v{V0+2}, v{V0}, v{V0+1}")
    E(f"v_lshlrev_b32 v{V0}, 16, v{V0+2}")
    E(f"v_and_b32 v{V0+1}, s{sHI}, v{V0+2}")
    E(f"v_add_f32 v{V0}, v{V0}, v{V0+1}")
    E(f"v_cvt_pk_bf16_f32 v{V0}, v{V0}, v{V0}")
    E("s_mov_b64 exec, 0x03030303")
    E(f"buffer_store_short v{V0}, v158, {sr(SO)}, s{sFin} offen")
    E("s_cmp_lg_u32 s2, 0")
    E("s_cbranch_scc1 L_DONE")
    E("s_mov_b64 exec, 1")
    E(f"v_mov_b32 v28, s{sEp}")
    E(f"s_mov_b32 s{sT}, {hex(EP)}")
    E(f"buffer_store_dword v28, off, {sr(SWS)}, s{sT} sc1")
    E("L_DONE:")
    if DIAG:
        E("s_mov_b64 exec, -1")
        E("s_waitcnt vmcnt(0)")
        stamp(22)
        E(f"s_lshl_b32 s{sT}, s2, 3")
        E(f"s_add_u32 s{sT}, s{sT}, s{sW}")
        E(f"s_lshl_b32 s{sT}, s{sT}, 8")
        E(f"s_add_u32 s{sT}, s{sT}, {hex(DG)}")
        E("v_lshlrev_b32 v28, 2, v0")
        E(f"buffer_store_dword v31, v28, {sr(SWS)}, s{sT} offen")
    E("L_END:")
    L=[x for x in L if x]
    body=hazard_pass(L)
    ref=open(f"cdna_kernels/{NAME}.s.ref").read().split("\n")
    hdr=[l for l in ref if l.startswith(";") and "@launch" not in l]
    out=hdr+[f"; @launch grid=(256,1,1) block=(512,1,1) lds={LDS}",
      '.amdgcn_target "amdgcn-amd-amdhsa--gfx950"',".text",f".globl {NAME}_kernel",".p2align 8",
      f".type {NAME}_kernel,@function",f"{NAME}_kernel:"]+body+["s_endpgm",'.section .rodata,"a"',".p2align 6",
      f".amdhsa_kernel {NAME}_kernel","  .amdhsa_next_free_vgpr 256","  .amdhsa_next_free_sgpr 102",
      "  .amdhsa_accum_offset 256","  .amdhsa_group_segment_fixed_size 0","  .amdhsa_kernarg_size 104",
      "  .amdhsa_user_sgpr_count 2","  .amdhsa_user_sgpr_kernarg_segment_ptr 1",
      "  .amdhsa_system_sgpr_workgroup_id_x 1",".end_amdhsa_kernel",""]
    return "\n".join(out)

if __name__=="__main__":
    opt={}
    outp=f"cdna_kernels/{NAME}.s"
    for a in sys.argv[1:]:
        k,v=a.split("=",1)
        if k=="out": outp=v
        else:
            try: opt[k]=int(v,0)
            except: opt[k]=v
    open(outp,"w").write(gen(opt))
```

```python
import sys, struct, os
sys.path.insert(0, os.path.dirname(__file__))
from asmlib import hazard_pass
NAME="parallel_sum__gqa_block_cached__dense_activation_squared_relu__decode"
def f2u(x): return struct.unpack("<I", struct.pack("<f", x))[0]

def gen(opt):
    DIAG=opt.get("diag",0); NT=opt.get("nt","nt")
    NTW=opt.get("ntw",NT)
    PRIO=opt.get("prio",1)
    MASK=opt.get("mask",1)
    L=[]; E=L.append
    def vr(a,n=4): return f"v[{a}:{a+n-1}]"
    def sr(a,n=4): return f"s[{a}:{a+n-1}]"
    QP=0; EP=0x90000; OPR=0x100000; ML=0x200000; FPB=0x280000; FPA=0x300000; WSZ=0x400000; DG=0x400000
    WP=0; XB=0; QB=8192; MXB=QB+8*272; LSB=MXB+256; TGB=LSB+256; OPB=11008
    SA=81*16; OPW=4*SA
    LDS=OPB+8*OPW
    SX,SK,SV,SW1,SW2,SWS,SO,SB1,SB2=32,36,40,44,48,52,60,64,68
    sTag,sTg1,sTg2,sTg3=56,57,58,59
    sW,sKB,sT,sT2,sST,sPL,sPH,sM2,sM8=72,73,74,75,76,77,78,80,82
    sOPs,sMLs,sFin,sCnt,sSC,sL2E,sHI,sEp=84,85,86,87,88,89,90,91
    sCA,sCB=92,93; sS=94; sT3=95; sWT=79
    def stamp(i):
        if DIAG:
            E(f"s_memrealtime s[96:97]")
            E(f"s_waitcnt lgkmcnt(0)")
            E(f"v_writelane_b32 v31, s96, {i}")
    def prio(p):
        if PRIO: E(f"s_setprio {p}")
    vK,vV,vW1,vW2,vN,vG,vM=1,2,3,4,5,6,7
    vFF=3
    T=8; XF=24; KR=32; V0=160; X=192; D=224
    HX=144; B1R=152; XFN=156; B2F=157; ACC=128; WT=KR+64
    def tagit(r):
        for i,sx in enumerate((sTag,sTg1,sTg2,sTg3)): E(f"v_bfi_b32 v{r+i}, v{vFF}, s{sx}, v{r+i}")
    ATS=opt.get("ats",0)
    def pub(r,va,so,bit):
        if ATS&bit:
            E(f"buffer_atomic_swap_x2 {vr(r,2)}, v{va}, {sr(SWS)}, s{so} offen sc1")
            E(f"buffer_atomic_swap_x2 {vr(r+2,2)}, v{va}, {sr(SWS)}, s{so} offen offset:8 sc1")
            return 2
        E(f"buffer_store_dwordx4 {vr(r)}, v{va}, {sr(SWS)}, s{so} offen sc1")
        return 1
    def tagchk(qs,t):
        for n,q in enumerate(qs):
            E(f"v_perm_b32 v{t}, v{q+1}, v{q}, s{sCA}")
            E(f"v_perm_b32 v{t+1}, v{q+3}, v{q+2}, s{sCB}")
            if n==0:
                E(f"v_or_b32 v{t+2}, v{t}, v{t+1}")
                if len(qs)>1: E(f"v_xor_b32 v{t+2}, s{sTag}, v{t+2}")
            else:
                E(f"v_or_b32 v{t}, v{t}, v{t+1}")
                E(f"v_xor_b32 v{t}, s{sTag}, v{t}")
                E(f"v_or_b32 v{t+2}, v{t+2}, v{t}")
        if len(qs)>1: E(f"v_cmp_ne_u32 vcc, 0, v{t+2}")
        else: E(f"v_cmp_ne_u32 vcc, s{sTag}, v{t+2}")
    E("s_cmp_ge_u32 s2, 0x100")
    E("s_cbranch_scc1 L_END")
    E("s_load_dwordx8 s[4:11], s[0:1], 0")
    E("s_load_dwordx8 s[12:19], s[0:1], 32")
    E("s_load_dwordx8 s[20:27], s[0:1], 64")
    E("s_load_dwordx2 s[28:29], s[0:1], 96")
    E("v_lshrrev_b32 v1, 6, v0")
    E("v_and_b32 v0, 63, v0")
    E(f"v_readfirstlane_b32 s{sW}, v1")
    E(f"v_and_b32 v{vN}, 15, v0")
    E(f"v_lshrrev_b32 v{vG}, 4, v0")
    if DIAG: E("v_mov_b32 v31, 0")
    E("v_and_b32 v10, 1, v0")
    E("v_lshlrev_b32 v10, 11, v10")
    E("v_lshrrev_b32 v11, 1, v0")
    E("v_lshl_add_u32 v28, v11, 4, v10")
    E(f"v_lshl_add_u32 v29, v{vG}, 4, v10")
    E(f"s_and_b32 s{sT}, s2, 3")
    E(f"s_lshl_b32 s{sT}, s{sT}, 8")
    E(f"s_lshl_b32 s{sT2}, s{sW}, 5")
    E(f"s_add_u32 s{sT}, s{sT}, s{sT2}")
    E(f"s_lshl_b32 s{sT3}, s{sT}, 1")
    E("s_cmp_lt_u32 s2, 0x80")
    E(f"s_movk_i32 s{sST}, 0x1c00")
    E(f"s_cselect_b32 s{sST}, 0x2000, s{sST}")
    E(f"s_mul_i32 s{sT}, s{sT}, s{sST}")
    E(f"s_lshr_b32 s{sT2}, s2, 2")
    E(f"s_and_b32 s{sT2}, s{sT2}, 31")
    E(f"s_lshl_b32 s{sCnt}, s{sT2}, 8")
    E(f"s_add_u32 s{sT}, s{sT}, s{sCnt}")
    E(f"s_lshl_b32 s{sCnt}, s{sST}, 3")
    E(f"v_lshlrev_b32 v{vW1}, 4, v{vN}")
    E(f"v_mad_u32_u24 v{vW1}, v{vG}, s{sCnt}, v{vW1}")
    E("s_waitcnt lgkmcnt(0)")
    stamp(0)
    def srd(r,lo,nrec):
        E(f"s_mov_b32 s{r}, s{lo}"); E(f"s_mov_b32 s{r+1}, s{lo+1}")
        if nrec is not None: E(f"s_mov_b32 s{r+2}, {hex(nrec)}")
        E(f"s_mov_b32 s{r+3}, 0x20000")
    srd(SX,4,4096)
    for i in range(4): E(f"buffer_load_dwordx4 {vr(T+4*i)}, v28, {sr(SX)}, 0 offen offset:{512*i}")
    E(f"buffer_load_dwordx4 {vr(XF)}, v29, {sr(SX)}, s{sT3} offen")
    E("s_cmp_lt_u32 s2, 0x80")
    E(f"s_cselect_b32 s{SW1}, s10, s16")
    E(f"s_cselect_b32 s{SW1+1}, s11, s17")
    E(f"s_mov_b32 s{SW1+2}, 0x700000")
    E(f"s_cselect_b32 s{SW1+2}, 0x800000, s{SW1+2}")
    E(f"s_cmp_lt_u32 s2, {128+112}")
    E(f"s_cselect_b32 s{SW1+2}, s{SW1+2}, 0")
    E(f"s_mov_b32 s{SW1+3}, 0x20000")
    for i in range(8):
        E(f"buffer_load_dwordx4 {vr(X+4*i)}, v{vW1}, {sr(SW1)}, s{sT} offen {NTW}")
        if i<7: E(f"s_add_u32 s{sT}, s{sT}, s{sST}")
    srd(SWS,28,WSZ+(0x100000 if DIAG else 0))
    E(f"s_cmp_lg_u32 s{sW}, 7")
    E("s_cbranch_scc1 L_NOEP")
    E("s_mov_b64 exec, 1")
    E(f"s_mov_b32 s{sT}, {hex(EP)}")
    E(f"buffer_load_dword v30, off, {sr(SWS)}, s{sT} sc1")
    E("s_mov_b64 exec, -1")
    E("L_NOEP:")
    srd(SK,6,0x4000000); srd(SV,8,0x4000000)
    E(f"s_and_b32 s{sT}, s2, 7")
    E(f"s_lshl_b32 s{sKB}, s{sT}, 23")
    E(f"s_lshr_b32 s{sS}, s2, 3")
    E(f"s_lshl_b32 s{sT2}, s{sS}, 18")
    E(f"s_add_u32 s{sKB}, s{sKB}, s{sT2}")
    E(f"s_lshl_b32 s{sT2}, s{sW}, 15")
    E(f"s_add_u32 s{sKB}, s{sKB}, s{sT2}")
    E(f"v_and_b32 v28, 3, v{vN}")
    E(f"v_lshlrev_b32 v28, 10, v28")
    E(f"v_lshrrev_b32 v29, 2, v{vN}")
    E(f"v_lshl_add_u32 v28, v29, 8, v28")
    E(f"v_lshl_add_u32 v{vK}, v{vG}, 4, v28")
    E(f"v_lshlrev_b32 v{vV}, 4, v0")
    def kload(t0,t1):
        for t in range(t0,t1):
            E(f"s_add_u32 s{sT}, s{sKB}, {4096*t}")
            for kk in range(4):
                E(f"buffer_load_dwordx4 {vr(KR+16*t+4*kk)}, v{vK}, {sr(SK)}, s{sT} offen offset:{64*kk} {NT}")
    def vload(u,base):
        for h in range(2):
            E(f"s_add_u32 s{sT}, s{sKB}, {8192*u+4096*h}")
            for i in range(4):
                E(f"buffer_load_dwordx4 {vr(base+16*h+4*i)}, v{vV}, {sr(SV)}, s{sT} offen offset:{1024*i} {NT}")
    KE=opt.get("kearly",0)
    if KE: kload(0,KE)
    E(f"s_and_b32 s{sT2}, s2, 7")
    E(f"s_lshl_b32 s{sOPs}, s{sT2}, 17")
    E(f"s_lshl_b32 s{sT3}, s{sS}, 9")
    E(f"s_add_u32 s{sOPs}, s{sOPs}, s{sT3}")
    E(f"s_add_u32 s{sOPs}, s{sOPs}, {hex(OPR)}")
    E(f"s_lshl_b32 s{sMLs}, s{sT2}, 12")
    E(f"s_lshl_b32 s{sT3}, s{sS}, 4")
    E(f"s_add_u32 s{sMLs}, s{sMLs}, s{sT3}")
    E(f"s_add_u32 s{sMLs}, s{sMLs}, {hex(ML)}")
    E(f"s_mov_b32 s{sPL}, 0x05040100"); E(f"s_mov_b32 s{sPH}, 0x07060302")
    E(f"s_mov_b32 s{sM2}, 0x00030003"); E(f"s_mov_b32 s{sM2+1}, 0x00030003")
    E(f"s_mov_b32 s{sM8}, 0x00ff00ff"); E(f"s_mov_b32 s{sM8+1}, 0x00ff00ff")
    E(f"s_mov_b32 s{sSC}, {hex(f2u(128**-0.5))}")
    E(f"s_mov_b32 s{sL2E}, {hex(f2u(1.4426950408889634))}")
    E(f"s_mov_b32 s{sHI}, 0xffff0000")
    E(f"s_mov_b32 s{sCA}, 0x0c0c0400"); E(f"s_mov_b32 s{sCB}, 0x04000c0c")
    srd(SO,24,4096); srd(SB1,18,7168); srd(SB2,22,2048)
    E(f"s_cmp_lt_u32 s2, 224")
    E(f"s_cselect_b32 s{SW2+2}, 0x700000, 0")
    E(f"s_cselect_b32 s{SB1+2}, 7168, 0")
    E(f"s_and_b32 s{sT2}, s{sW}, 3")
    E(f"s_lshl_b32 s{sT}, s{sS}, 18")
    E(f"s_lshl_b32 s{sT3}, s{sT2}, 16")
    E(f"s_add_u32 s{sT}, s{sT}, s{sT3}")
    E(f"s_and_b32 s{sT3}, s2, 7")
    E(f"s_lshl_b32 s{sT3}, s{sT3}, 8")
    E(f"s_add_u32 s{sT}, s{sT}, s{sT3}")
    E(f"s_lshr_b32 s{sWT}, s2, 1")
    E(f"s_lshl_b32 s{sWT}, s{sWT}, 16")
    E(f"s_and_b32 s{sT3}, s2, 1")
    E(f"s_lshl_b32 s{sT3}, s{sT3}, 10")
    E(f"s_add_u32 s{sWT}, s{sWT}, s{sT3}")
    E(f"s_lshl_b32 s{sT3}, s{sT2}, 8")
    E(f"s_add_u32 s{sWT}, s{sWT}, s{sT3}")
    E(f"s_cmp_lt_u32 s{sW}, 4")
    E(f"s_cselect_b32 s{SW2}, s12, s20")
    E(f"s_cselect_b32 s{SW2+1}, s13, s21")
    E(f"s_cselect_b32 s{SW2+2}, 0x800000, s{SW2+2}")
    E(f"s_cselect_b32 s{sWT}, s{sWT}, s{sT}")
    E(f"s_mov_b32 s{SW2+3}, 0x20000")
    E(f"v_lshlrev_b32 v{vW2}, 4, v{vN}")
    E(f"v_lshl_add_u32 v{vW2}, v{vG}, 12, v{vW2}")
    E(f"v_mov_b32 v{vFF}, 0xff")
    TLB=opt.get("tlb",0); NPR=0
    if TLB>=2:
        E("v_lshlrev_b32 v27, 20, v0")
        E("s_mov_b64 exec, 1")
        if TLB&4: E(f"buffer_load_dword v159, off, {sr(SK)}, s{sKB} {NT}"); NPR+=1
        if TLB&8: E(f"buffer_load_dword v159, off, {sr(SV)}, s{sKB} {NT}"); NPR+=1
        if TLB&16: E(f"buffer_load_dword v159, off, {sr(SW2)}, s{sWT} {NT}"); NPR+=1
        if TLB&32:
            E("s_mov_b64 exec, 15")
            E(f"buffer_load_dword v159, v27, {sr(SWS)}, 0 offen sc1"); NPR+=1
        E("s_mov_b64 exec, -1")
    E(f"s_waitcnt vmcnt({9+4*KE+NPR})")
    for i in range(16):
        E(f"v_lshlrev_b32 v{D+2*i}, 16, v{T+i}")
        E(f"v_and_b32 v{D+2*i+1}, s{sHI}, v{T+i}")
    def allred_parity(r,t):
        for k in (2,4,8):
            E(f"v_add_f32_dpp v{r}, v{r}, v{r} row_ror:{k} row_mask:0xf bank_mask:0xf")
        for sw in ("v_permlane16_swap_b32","v_permlane32_swap_b32"):
            E(f"v_mov_b32 v{t}, v{r}")
            E(f"{sw} v{r}, v{t}")
            E(f"v_add_f32 v{r}, v{r}, v{t}")
    def tree_sum(src,n,tmp):
        for a in range(4): E(f"v_add_f32 v{tmp+a}, v{src+a}, v{src+4+a}")
        for i in range(8,n): E(f"v_add_f32 v{tmp+(i&3)}, v{tmp+(i&3)}, v{src+i}")
        E(f"v_add_f32 v{tmp}, v{tmp}, v{tmp+1}"); E(f"v_add_f32 v{tmp+2}, v{tmp+2}, v{tmp+3}")
        E(f"v_add_f32 v{tmp}, v{tmp}, v{tmp+2}")
    tree_sum(D,32,T)
    allred_parity(T,T+1)
    E(f"v_mul_f32 v{T+4}, {hex(f2u(1/1024))}, v{T}")
    for i in range(32): E(f"v_sub_f32 v{D+i}, v{D+i}, v{T+4}")
    for a in range(4): E(f"v_mul_f32 v{T+a}, v{D+a}, v{D+a}")
    for i in range(4,32): E(f"v_fmac_f32 v{T+(i&3)}, v{D+i}, v{D+i}")
    E(f"v_add_f32 v{T}, v{T}, v{T+1}"); E(f"v_add_f32 v{T+2}, v{T+2}, v{T+3}"); E(f"v_add_f32 v{T}, v{T}, v{T+2}")
    allred_parity(T,T+1)
    E(f"v_mul_f32 v{T}, {hex(f2u(1/1024))}, v{T}")
    E(f"v_cvt_pk_bf16_f32 v{T+1}, v{T+4}, v{T}")
    E(f"v_lshlrev_b32 v{T+4}, 16, v{T+1}")
    E(f"v_and_b32 v{T}, s{sHI}, v{T+1}")
    E(f"v_add_f32 v{T}, {hex(f2u(1e-5))}, v{T}")
    E(f"v_cvt_pk_bf16_f32 v{T}, v{T}, v{T}")
    E(f"v_and_b32 v{T}, s{sHI}, v{T}")
    E(f"v_sqrt_f32 v{T}, v{T}")
    E(f"v_cvt_pk_bf16_f32 v{T}, v{T}, v{T}")
    E(f"v_and_b32 v{T}, s{sHI}, v{T}")
    E(f"v_rcp_f32 v{T+1}, v{T}")
    E(f"s_waitcnt vmcnt({8+4*KE+NPR})")
    for i in range(4):
        E(f"v_lshlrev_b32 v{D+2*i}, 16, v{XF+i}")
        E(f"v_and_b32 v{D+2*i+1}, s{sHI}, v{XF+i}")
    for i in range(8): E(f"v_sub_f32 v{D+i}, v{D+i}, v{T+4}")
    for i in range(4): E(f"v_cvt_pk_bf16_f32 v{XF+i}, v{D+2*i}, v{D+2*i+1}")
    for i in range(4):
        E(f"v_lshlrev_b32 v{D+2*i}, 16, v{XF+i}")
        E(f"v_and_b32 v{D+2*i+1}, s{sHI}, v{XF+i}")
    for i in range(8): E(f"v_mul_f32 v{D+8+i}, v{D+i}, v{T+1}")
    for i in range(8): E(f"v_fma_f32 v{D+i}, -v{D+8+i}, v{T}, v{D+i}")
    for i in range(8): E(f"v_fmac_f32 v{D+8+i}, v{D+i}, v{T+1}")
    for i in range(4): E(f"v_cvt_pk_bf16_f32 v{XF+i}, v{D+8+2*i}, v{D+8+2*i+1}")
    stamp(1)
    def perms(R,e,dst):
        w=e>>1; sel=sPH if e&1 else sPL
        for u in range(4):
            E(f"v_perm_b32 v{dst+u}, v{R+4*(2*u+1)+w}, v{R+4*(2*u)+w}, s{sel}")
    def tile_mm(R, order, mm):
        for idx,e in enumerate(order):
            perms(R,e,T+4*(idx&3))
            if idx>0: mm(order[idx-1],T+4*((idx-1)&3))
        mm(order[-1],T+4*((len(order)-1)&3))
    def gemv_addr():
        E(f"v_lshlrev_b32 v29, 9, v{vN}")
        E(f"v_lshl_add_u32 v29, v{vG}, 7, v29")
        E(f"s_lshl_b32 s{sT}, s{sW}, 10")
        E(f"v_add_u32 v29, s{sT}, v29")
    gemv_addr()
    E(f"s_waitcnt vmcnt({4*KE+NPR})")
    stamp(2)
    if KE<2: kload(KE,2)
    tile_mm(X, list(range(8)), lambda e,a: E(f"v_mfma_f32_16x16x32_bf16 {vr(D+4*e)}, {vr(a)}, {vr(XF)}, 0"))
    def gemv_to_lds():
        E(f"s_mov_b64 exec, s[{sM2}:{sM2+1}]")
        for e in range(8): E(f"ds_write_b128 v29, {vr(D+4*e)} offset:{WP+16*e}")
        E("s_mov_b64 exec, -1")
    gemv_to_lds()
    E(f"s_cmp_lg_u32 s{sW}, 7")
    E("s_cbranch_scc1 L_B1")
    E("s_mov_b64 exec, 1")
    E("v_mov_b32 v29, 0")
    E(f"ds_write_b32 v29, v30 offset:{TGB}")
    E("s_mov_b64 exec, -1")
    E("L_B1:")
    E("s_waitcnt lgkmcnt(0)")
    E("s_barrier")
    stamp(3)
    E("v_mov_b32 v29, 0")
    E(f"ds_read_b32 v30, v29 offset:{TGB}")
    def gettag():
        E(f"v_readfirstlane_b32 s{sEp}, v30")
        E(f"s_add_u32 s{sEp}, s{sEp}, 1")
        E(f"s_mul_i32 s{sTag}, s{sEp}, 0x9e3779b1")
        E(f"s_lshr_b32 s{sTg1}, s{sTag}, 8"); E(f"s_lshr_b32 s{sTg2}, s{sTag}, 16"); E(f"s_lshr_b32 s{sTg3}, s{sTag}, 24")
    E(f"s_cmp_ge_u32 s{sW}, 4")
    E("s_cbranch_scc1 L_SVC")
    E(f"s_cmp_lg_u32 s{sW}, 0")
    E("s_cbranch_scc1 L_A1")
    R=D
    for w in range(8): E(f"ds_read_b128 {vr(R+4*w)}, v{vV} offset:{WP+1024*w}")
    E("s_waitcnt lgkmcnt(8)")
    gettag()
    E("s_waitcnt lgkmcnt(0)")
    for st in (16,8,4):
        for i in range(0,st,2): E(f"v_pk_add_f32 {vr(R+i,2)}, {vr(R+i,2)}, {vr(R+st+i,2)}")
    tagit(R)
    E(f"s_lshl_b32 s{sT}, s2, 10")
    pub(R,vV,sT,4)
    E("L_A1:")
    kload(2,8); vload(0,V0); vload(1,X)
    E("s_waitcnt lgkmcnt(0)")
    gettag()
    stamp(4)
    E("s_barrier")
    stamp(6)
    E("s_branch L_QK")
    E("L_SVC:")
    prio(3)
    E("v_lshrrev_b32 v28, 5, v0")
    E("v_and_b32 v29, 31, v0")
    E("v_lshlrev_b32 v27, 12, v28")
    E("v_lshl_add_u32 v27, v29, 4, v27")
    E(f"s_and_b32 s{sT}, s2, 3")
    E(f"s_lshl_b32 s{sFin}, s{sT}, 15")
    E(f"s_lshr_b32 s{sT2}, s2, 2")
    E(f"s_and_b32 s{sT2}, s{sT2}, 1")
    E(f"s_lshl_b32 s{sT2}, s{sT2}, 9")
    E(f"s_add_u32 s{sFin}, s{sFin}, s{sT2}")
    E(f"s_and_b32 s{sT2}, s{sW}, 3")
    E(f"s_lshl_b32 s{sT3}, s{sT2}, 13")
    E(f"s_add_u32 s{sFin}, s{sFin}, s{sT3}")
    QG=V0
    def qloads():
        for ks in range(4):
            E(f"buffer_load_dwordx4 {vr(QG+4*ks)}, v27, {sr(SWS)}, s{sFin} offen offset:{1024*ks} sc1")
    QF=opt.get("qfirst",0)
    KF=4
    if QF: kload(2,2+QF)
    qloads()
    kload(2+QF,KF)
    E("v_mul_u32_u24 v28, 272, v28")
    E("v_lshrrev_b32 v26, 3, v29")
    E("v_lshl_add_u32 v28, v26, 6, v28")
    E("v_and_b32 v26, 7, v29")
    E("v_lshl_add_u32 v28, v26, 1, v28")
    E(f"s_mul_i32 s{sT3}, s{sT2}, 544")
    E(f"v_add_u32 v28, s{sT3}, v28")
    E("s_waitcnt lgkmcnt(0)")
    gettag()
    E(f"s_mov_b32 s{sCnt}, 0")
    E(f"s_waitcnt vmcnt({4*(KF-2-QF)})")
    stamp(4)
    E("L_POLL0:")
    tagchk([QG+4*i for i in range(4)],T)
    E("s_cbranch_vccz L_POLL0_DONE")
    E(f"s_add_u32 s{sCnt}, s{sCnt}, 1")
    E(f"s_cmp_gt_u32 s{sCnt}, 0x20000")
    E("s_cbranch_scc1 L_POLL0_DONE")
    if MASK: E("s_mov_b64 exec, vcc")
    qloads()
    if MASK: E("s_mov_b64 exec, -1")
    E("s_waitcnt vmcnt(0)")
    E("s_branch L_POLL0")
    E("L_POLL0_DONE:")
    stamp(5)
    b=QG
    for i in (0,2): E(f"v_pk_add_f32 {vr(b+i,2)}, {vr(b+i,2)}, {vr(b+4+i,2)}")
    for i in (0,2): E(f"v_pk_add_f32 {vr(b+8+i,2)}, {vr(b+8+i,2)}, {vr(b+12+i,2)}")
    for i in (0,2): E(f"v_pk_add_f32 {vr(b+i,2)}, {vr(b+i,2)}, {vr(b+8+i,2)}")
    E(f"v_cvt_pk_bf16_f32 v{b}, v{b}, v{b+1}")
    E(f"v_cvt_pk_bf16_f32 v{b+1}, v{b+2}, v{b+3}")
    E(f"ds_write_b16 v28, v{b} offset:{QB}")
    E(f"ds_write_b16_d16_hi v28, v{b} offset:{QB+16}")
    E(f"ds_write_b16 v28, v{b+1} offset:{QB+32}")
    E(f"ds_write_b16_d16_hi v28, v{b+1} offset:{QB+48}")
    E("s_waitcnt lgkmcnt(0)")
    KB2=opt.get("kb2",0)
    if KB2: kload(KF,8); vload(0,V0); vload(1,X)
    E("s_barrier")
    stamp(6)
    if not KB2: kload(KF,8); vload(0,V0); vload(1,X)
    E("L_QK:")
    stamp(7)
    E(f"v_and_b32 v28, 7, v0")
    E("v_mul_u32_u24 v28, 272, v28")
    E(f"v_lshl_add_u32 v28, v{vG}, 4, v28")
    for kk in range(4): E(f"ds_read_b128 {vr(T+4*kk)}, v28 offset:{QB+64*kk}")
    E("s_waitcnt lgkmcnt(0)")
    waits=[40,32,24,16]
    for p in range(4):
        E(f"s_waitcnt vmcnt({waits[p]})")
        for kk in range(4):
            for t in (2*p,2*p+1):
                c="0" if kk==0 else vr(D+4*t)
                E(f"v_mfma_f32_16x16x32_bf16 {vr(D+4*t)}, {vr(KR+16*t+4*kk)}, {vr(T+4*kk)}, {c}")
    stamp(8)
    for rnd in range(2):
        for i in range(16): E(f"v_cvt_pk_bf16_f32 v{T+i}, v{D+2*i}, v{D+2*i+1}")
        for i in range(16):
            E(f"v_lshlrev_b32 v{D+2*i}, 16, v{T+i}")
            E(f"v_and_b32 v{D+2*i+1}, s{sHI}, v{T+i}")
        if rnd==0:
            for i in range(0,32,2): E(f"v_pk_mul_f32 {vr(D+i,2)}, {vr(D+i,2)}, s[{sSC}:{sSC+1}] op_sel_hi:[1,0]")
    for a in range(4): E(f"v_max3_f32 v{T+a}, v{D+a}, v{D+4+a}, v{D+8+a}")
    for i in range(12,28,8):
        for a in range(4): E(f"v_max3_f32 v{T+a}, v{T+a}, v{D+i+a}, v{D+i+4+a}")
    for a in range(4): E(f"v_max_f32 v{T+a}, v{T+a}, v{D+28+a}")
    E(f"v_max3_f32 v{T}, v{T}, v{T+1}, v{T+2}"); E(f"v_max_f32 v{T}, v{T}, v{T+3}")
    def allred_g(r,t,op):
        for sw in ("v_permlane16_swap_b32","v_permlane32_swap_b32"):
            E(f"v_mov_b32 v{t}, v{r}")
            E(f"{sw} v{r}, v{t}")
            E(f"{op} v{r}, v{r}, v{t}")
    allred_g(T,T+1,"v_max_f32")
    E("v_and_b32 v28, 7, v0")
    E("v_lshlrev_b32 v28, 5, v28")
    E(f"s_lshl_b32 s{sT}, s{sW}, 2")
    E(f"v_add_u32 v29, s{sT}, v28")
    E("s_mov_b64 exec, 0xff")
    E(f"ds_write_b32 v29, v{T} offset:{MXB}")
    E("s_mov_b64 exec, -1")
    E("s_waitcnt lgkmcnt(0)")
    E("s_barrier")
    stamp(9)
    E(f"ds_read_b128 {vr(T)}, v28 offset:{MXB}")
    E(f"ds_read_b128 {vr(T+4)}, v28 offset:{MXB+16}")
    E("s_waitcnt lgkmcnt(0)")
    E(f"v_max3_f32 v{T}, v{T}, v{T+1}, v{T+2}"); E(f"v_max3_f32 v{T+4}, v{T+4}, v{T+5}, v{T+6}")
    E(f"v_max3_f32 v{T}, v{T}, v{T+3}, v{T+7}"); E(f"v_max_f32 v{T}, v{T}, v{T+4}")
    E(f"v_mul_f32 v{vM}, s{sL2E}, v{T}")
    for i in range(32): E(f"v_fma_f32 v{D+i}, v{D+i}, s{sL2E}, -v{vM}")
    for i in range(32): E(f"v_exp_f32 v{D+i}, v{D+i}")
    tree_sum(D,32,T)
    allred_g(T,T+1,"v_add_f32")
    E("s_mov_b64 exec, 0xff")
    E(f"ds_write_b32 v29, v{T} offset:{LSB}")
    E("s_mov_b64 exec, -1")
    E("s_waitcnt lgkmcnt(0)")
    E("s_barrier")
    stamp(10)
    if opt.get("tlb",0)==1:
        E("v_lshlrev_b32 v27, 11, v0")
        E("s_mov_b64 exec, 0xffffffff")
        E(f"buffer_load_dword v159, v27, {sr(SW2)}, s{sWT} offen")
        E("s_mov_b64 exec, -1")
    E(f"s_cmp_lt_u32 s{sW}, 4")
    E("s_cbranch_scc1 L_AV")
    E(f"s_cmp_lg_u32 s{sW}, 4")
    E("s_cbranch_scc1 L_BX")
    E(f"ds_read_b128 {vr(T)}, v28 offset:{LSB}")
    E(f"ds_read_b128 {vr(T+4)}, v28 offset:{LSB+16}")
    E("v_lshlrev_b32 v28, 4, v28")
    E(f"v_mov_b32 v{T+8}, v{vM}")
    E(f"v_mov_b32 v{T+10}, s{sTag}")
    E(f"v_mov_b32 v{T+11}, s{sTag}")
    E("s_waitcnt lgkmcnt(0)")
    E(f"v_pk_add_f32 {vr(T,2)}, {vr(T,2)}, {vr(T+2,2)}")
    E(f"v_pk_add_f32 {vr(T+4,2)}, {vr(T+4,2)}, {vr(T+6,2)}")
    E(f"v_pk_add_f32 {vr(T,2)}, {vr(T,2)}, {vr(T+4,2)}")
    E(f"v_add_f32 v{T+9}, v{T}, v{T+1}")
    E("s_mov_b64 exec, 0xff")
    E(f"buffer_store_dwordx4 {vr(T+8)}, v28, {sr(SWS)}, s{sMLs} offen sc1")
    E("s_mov_b64 exec, -1")
    E("L_BX:")
    E(f"v_lshrrev_b32 v30, 1, v{vN}")
    E("v_and_b32 v30, 3, v30")
    E("v_lshlrev_b32 v30, 10, v30")
    E("v_and_b32 v27, 1, v0")
    E("v_lshl_add_u32 v30, v27, 9, v30")
    E(f"v_lshl_add_u32 v30, v{vG}, 5, v30")
    E(f"s_lshl_b32 s{sMLs}, s{sS}, 12")
    E(f"s_and_b32 s{sT2}, s{sW}, 3")
    E(f"s_lshl_b32 s{sT3}, s{sT2}, 7")
    E(f"s_add_u32 s{sMLs}, s{sMLs}, s{sT3}")
    E(f"s_add_u32 s{sMLs}, s{sMLs}, 0x20000")
    def hloads():
        E(f"buffer_load_dwordx4 {vr(HX)}, v30, {sr(SWS)}, s{sMLs} offen sc1")
        E(f"buffer_load_dwordx4 {vr(HX+4)}, v30, {sr(SWS)}, s{sMLs} offen offset:16 sc1")
    hloads()
    E(f"s_lshl_b32 s{sT}, s{sS}, 8")
    E(f"s_lshl_b32 s{sT3}, s{sT2}, 6")
    E(f"s_add_u32 s{sT}, s{sT}, s{sT3}")
    E(f"v_lshlrev_b32 v27, 2, v{vG}")
    for r in range(4): E(f"buffer_load_dword v{B1R+r}, v27, {sr(SB1)}, s{sT} offen offset:{16*r}")
    E("v_bfe_u32 v26, v0, 3, 1")
    E("v_lshlrev_b32 v26, 5, v26")
    E("v_and_b32 v27, 16, v0")
    E("v_or_b32 v26, v26, v27")
    E("v_and_b32 v27, 1, v0")
    E("v_lshl_add_u32 v158, v27, 1, v26")
    E(f"s_and_b32 s{sT}, s2, 7")
    E(f"s_lshl_b32 s{sT}, s{sT}, 8")
    E(f"s_lshr_b32 s{sT3}, s{sS}, 2")
    E(f"s_and_b32 s{sT3}, s{sT3}, 3")
    E(f"s_lshl_b32 s{sT3}, s{sT3}, 6")
    E(f"s_add_u32 s{sT}, s{sT}, s{sT3}")
    E(f"s_and_b32 s{sT3}, s{sS}, 3")
    E(f"s_lshl_b32 s{sT3}, s{sT3}, 2")
    E(f"s_add_u32 s{sT}, s{sT}, s{sT3}")
    E(f"s_lshr_b32 s{sT3}, s{sS}, 4")
    E(f"s_lshl_b32 s{sT3}, s{sT3}, 11")
    E(f"s_add_u32 s{sFin}, s{sT}, s{sT3}")
    E(f"buffer_load_ushort v{B2F}, v158, {sr(SB2)}, s{sT} offen")
    vload(2,KR); vload(3,KR+32)
    prio(1)
    E("s_branch L_PV")
    E("L_AV:")
    prio(2)
    vload(2,KR); vload(3,KR+32)
    prio(0)
    E("v_lshrrev_b32 v30, 5, v0")
    E("v_lshlrev_b32 v30, 14, v30")
    E("v_and_b32 v27, 31, v0")
    E("v_lshl_add_u32 v30, v27, 4, v30")
    E(f"s_lshl_b32 s{sMLs}, s{sS}, 9")
    E(f"s_add_u32 s{sMLs}, s{sMLs}, {hex(ML)}")
    E("L_PV:")
    stamp(11)
    for u in range(4):
        b=D+8*u
        for i in range(4): E(f"v_cvt_pk_bf16_f32 v{b+i}, v{b+2*i}, v{b+2*i+1}")
        for i in range(4): E(f"v_cndmask_b32 v{b+4+i}, v{b+i}, 0, s[{sM8}:{sM8+1}]")
        for i in range(4): E(f"v_cndmask_b32 v{b+i}, 0, v{b+i}, s[{sM8}:{sM8+1}]")
    MLR=X
    vb=[V0,X,KR,KR+32]
    WPOS=opt.get("wpos",3)
    vw={2:[24,16,8,9],1:[24,16,17,9],3:[24,16,8,0],4:[24,16,8,0]}[WPOS]
    order=[0,2,4,6,1,3,5,7]
    def wt_loads():
        for j in range(8):
            off=(8*(j&3)+(j>>2))*2048
            E(f"s_add_u32 s{sT3}, s{sWT}, {off&~4095}")
            E(f"buffer_load_dwordx4 {vr(WT+4*j)}, v{vW2}, {sr(SW2)}, s{sT3} offen offset:{off&4095} {NTW}")
    def tail_loads():
        E(f"s_cmp_lt_u32 s{sW}, 4")
        E("s_cbranch_scc1 L_TL_A")
        E(f"buffer_load_ushort v{XFN}, v158, {sr(SX)}, s{sFin} offen")
        E("s_branch L_TL_B")
        E("L_TL_A:")
        E(f"buffer_load_dwordx4 {vr(MLR)}, v30, {sr(SWS)}, s{sMLs} offen sc1")
        E("L_TL_B:")
        wt_loads()
    for u in range(4):
        if u==3:
            E(f"v_mul_u32_u24 v28, 20, v{vG}")
            E(f"v_add_lshl_u32 v28, v28, v{vN}, 4")
            E(f"s_mul_i32 s{sT}, s{sW}, {OPW}")
            E(f"v_add_u32 v28, s{sT}, v28")
        E(f"s_waitcnt vmcnt({vw[u]})")
        if u==3: stamp(15); prio(3)
        def mm(e,a,u=u):
            c="0" if (u==0 and e%2==0) else vr(ACC+4*(e>>1))
            E(f"v_mfma_f32_16x16x32_bf16 {vr(ACC+4*(e>>1))}, {vr(a)}, {vr(D+8*u+4*(e&1))}, {c}")
        tile_mm(vb[u],order,mm)
        if u==1: stamp(12)
        if u==WPOS and WPOS<3:
            stamp(13); tail_loads(); stamp(14)
    for q in range(4): E(f"ds_write_b128 v28, {vr(ACC+4*q)} offset:{OPB+q*SA}")
    if WPOS==4:
        E(f"s_cmp_lt_u32 s{sW}, 4")
        E("s_cbranch_scc1 L_B4")
        prio(0)
        E(f"buffer_load_ushort v{XFN}, v158, {sr(SX)}, s{sFin} offen")
        wt_loads()
        stamp(14)
        E("L_B4:")
    E("s_waitcnt lgkmcnt(0)")
    E("s_barrier")
    stamp(16)
    E(f"s_cmp_ge_u32 s{sW}, 4")
    E("s_cbranch_scc1 L_W2")
    E("v_and_b32 v28, 7, v0")
    E("v_lshrrev_b32 v29, 1, v28")
    E("v_mul_u32_u24 v29, 81, v29")
    E("v_and_b32 v28, 1, v0")
    E("v_lshl_add_u32 v29, v28, 3, v29")
    E("v_bfe_u32 v28, v0, 3, 2")
    E("v_mul_u32_u24 v28, 20, v28")
    E("v_add_u32 v29, v28, v29")
    E("v_lshrrev_b32 v28, 5, v0")
    E("v_add_u32 v29, v28, v29")
    E(f"s_lshl_b32 s{sT}, s{sW}, 1")
    E(f"v_add_lshl_u32 v29, v29, s{sT}, 4")
    for w in range(8): E(f"ds_read_b128 {vr(V0+4*w)}, v29 offset:{OPB+OPW*w}")
    E("v_lshlrev_b32 v28, 14, v28")
    E("v_and_b32 v29, 31, v0")
    E("v_lshl_add_u32 v28, v29, 4, v28")
    E(f"s_lshl_b32 s{sT}, s{sW}, 15")
    E(f"s_add_u32 s{sT}, s{sT}, s{sOPs}")
    E("v_lshrrev_b32 v26, 3, v0")
    E("v_lshlrev_b32 v26, 9, v26")
    E("v_and_b32 v27, 7, v0")
    E("v_lshl_add_u32 v26, v27, 4, v26")
    E(f"s_lshl_b32 s{sFin}, s{sS}, 14")
    E(f"s_lshl_b32 s{sT2}, s{sW}, 12")
    E(f"s_add_u32 s{sFin}, s{sFin}, s{sT2}")
    E(f"s_lshr_b32 s{sT2}, s2, 1")
    E(f"s_and_b32 s{sT2}, s{sT2}, 3")
    E(f"s_lshl_b32 s{sT2}, s{sT2}, 7")
    E(f"s_add_u32 s{sFin}, s{sFin}, s{sT2}")
    E(f"s_add_u32 s{sFin}, s{sFin}, {hex(OPR)}")
    E(f"s_add_u32 s{sT2}, s{sFin}, 0x80000")
    E("s_waitcnt lgkmcnt(0)")
    for st in (16,8,4):
        for i in range(0,st,2): E(f"v_pk_add_f32 {vr(V0+i,2)}, {vr(V0+i,2)}, {vr(V0+st+i,2)}")
    tagit(V0)
    pub(V0,28,sT,1)
    stamp(17)
    G=X+8; WG=X+4
    def hop1_loads():
        E(f"buffer_load_dwordx4 {vr(G)}, v26, {sr(SWS)}, s{sFin} offen sc1")
        E(f"buffer_load_dwordx4 {vr(G+4)}, v26, {sr(SWS)}, s{sT2} offen sc1")
    if WPOS>=3:
        E(f"buffer_load_dwordx4 {vr(MLR)}, v30, {sr(SWS)}, s{sMLs} offen sc1")
        wt_loads()
        stamp(14)
    hop1_loads()
    E(f"s_mov_b32 s{sCnt}, 0")
    E(f"s_waitcnt vmcnt({10 if WPOS>=3 else 11})")
    E("L_POLLM:")
    E(f"v_cmp_ne_u32 vcc, s{sTag}, v{MLR+2}")
    E("s_cbranch_vccz L_POLLM_DONE")
    E(f"s_add_u32 s{sCnt}, s{sCnt}, 1")
    E(f"s_cmp_gt_u32 s{sCnt}, 0x20000")
    E("s_cbranch_scc1 L_POLLM_DONE")
    if MASK: E("s_mov_b64 exec, vcc")
    E(f"buffer_load_dwordx4 {vr(MLR)}, v30, {sr(SWS)}, s{sMLs} offen sc1")
    if MASK: E("s_mov_b64 exec, -1")
    E("s_waitcnt vmcnt(0)")
    E("s_branch L_POLLM")
    E("L_POLLM_DONE:")
    def allred32(r,t,op):
        for k in (1,2,4,8): E(f"{op}_dpp v{r}, v{r}, v{r} row_ror:{k} row_mask:0xf bank_mask:0xf")
        E(f"v_mov_b32 v{t}, v{r}")
        E(f"v_permlane16_swap_b32 v{r}, v{t}")
        E(f"{op} v{r}, v{r}, v{t}")
    E(f"v_mov_b32 v{T}, v{MLR}")
    allred32(T,T+1,"v_max_f32")
    E(f"v_sub_f32 v{MLR}, v{MLR}, v{T}")
    E(f"v_exp_f32 v{MLR}, v{MLR}")
    E(f"v_mul_f32 v{T}, v{MLR}, v{MLR+1}")
    allred32(T,T+1,"v_add_f32")
    E(f"v_rcp_f32 v{T}, v{T}")
    E(f"v_mul_f32 v{MLR}, v{MLR}, v{T}")
    E("v_lshrrev_b32 v28, 3, v0")
    E(f"s_lshl_b32 s{sT}, s{sW}, 3")
    E(f"v_add_lshl_u32 v28, v28, s{sT}, 2")
    E(f"ds_bpermute_b32 v{WG}, v28, v{MLR}")
    E(f"ds_bpermute_b32 v{WG+1}, v28, v{MLR} offset:128")
    for i in range(0,32,2): E(f"v_mov_b64 {vr(D+i,2)}, 0")
    E("v_bfe_u32 v28, v0, 3, 1")
    E("v_lshlrev_b32 v28, 1, v28")
    E("v_bfe_u32 v29, v0, 4, 1")
    E("v_add_u32 v28, v28, v29")
    E("v_and_b32 v29, 1, v0")
    E("v_lshl_add_u32 v28, v29, 2, v28")
    E("v_bfe_u32 v29, v0, 1, 2")
    E("v_lshl_add_u32 v28, v29, 3, v28")
    E("v_lshrrev_b32 v29, 5, v0")
    E("v_lshl_add_u32 v28, v29, 5, v28")
    E(f"s_lshl_b32 s{sT}, s{sW}, 6")
    E(f"v_add_lshl_u32 v28, v28, s{sT}, 2")
    E("v_and_b32 v29, 1, v0")
    E("v_lshlrev_b32 v29, 7, v29")
    E(f"v_lshl_add_u32 v29, v{vG}, 5, v29")
    TR=opt.get("tr",0)
    if TR:
        E("v_and_b32 v23, 1, v0")
        E("v_lshlrev_b32 v23, 19, v23")
        E(f"v_lshl_add_u32 v23, v{vG}, 17, v23")
        E(f"v_lshrrev_b32 v22, 2, v{vN}")
        E("v_lshl_add_u32 v23, v22, 15, v23")
        E("v_bfe_u32 v22, v0, 1, 1")
        E("v_lshl_add_u32 v23, v22, 4, v23")
        E(f"s_and_b32 s{sOPs}, s2, 1")
        E(f"s_lshl_b32 s{sOPs}, s{sOPs}, 14")
        E(f"s_lshl_b32 s{sT}, s{sW}, 12")
        E(f"s_add_u32 s{sOPs}, s{sOPs}, s{sT}")
        E(f"s_lshr_b32 s{sT}, s2, 1")
        E(f"s_lshl_b32 s{sT}, s{sT}, 5")
        E(f"s_add_u32 s{sOPs}, s{sOPs}, s{sT}")
        E(f"s_add_u32 s{sOPs}, s{sOPs}, {hex(FPA)}")
    else:
        E("v_and_b32 v23, 1, v0")
        E("v_lshlrev_b32 v23, 9, v23")
        E(f"v_lshl_add_u32 v23, v{vG}, 7, v23")
        E(f"v_lshrrev_b32 v22, 1, v{vN}")
        E("v_lshl_add_u32 v23, v22, 4, v23")
        E(f"s_lshl_b32 s{sOPs}, s2, 12")
        E(f"s_lshl_b32 s{sT}, s{sW}, 10")
        E(f"s_add_u32 s{sOPs}, s{sOPs}, s{sT}")
        E(f"s_add_u32 s{sOPs}, s{sOPs}, {hex(FPA)}")
    E("s_mov_b32 s98, 0xff00ff00"); E("s_mov_b32 s99, 0xff00ff00")
    E(f"s_waitcnt vmcnt({2 if WPOS>=3 else 3})")
    stamp(18)
    for e in range(8): perms(WT,e,KR+4*e)
    E(f"s_mov_b32 s{sCnt}, 0")
    E("L_POLL1:")
    E("s_waitcnt vmcnt(0) lgkmcnt(0)")
    tagchk([G,G+4],T)
    E("s_cbranch_vccz L_POLL1_DONE")
    E(f"s_add_u32 s{sCnt}, s{sCnt}, 1")
    E(f"s_cmp_gt_u32 s{sCnt}, 0x40000")
    E("s_cbranch_scc1 L_POLL1_DONE")
    if MASK: E("s_mov_b64 exec, vcc")
    hop1_loads()
    if MASK: E("s_mov_b64 exec, -1")
    E("s_branch L_POLL1")
    E("L_POLL1_DONE:")
    stamp(19)
    for bb in range(2):
        for i in (0,2): E(f"v_pk_mul_f32 {vr(G+4*bb+i,2)}, {vr(G+4*bb+i,2)}, {vr(WG,2)} op_sel:[0,{bb}] op_sel_hi:[1,{bb}]")
    for r in range(4): E(f"v_permlane32_swap_b32 v{G+r}, v{G+4+r}")
    for i in (0,2): E(f"v_pk_add_f32 {vr(G+i,2)}, {vr(G+i,2)}, {vr(G+4+i,2)}")
    E(f"v_permlane16_swap_b32 v{G}, v{G+1}")
    E(f"v_permlane16_swap_b32 v{G+2}, v{G+3}")
    E(f"v_add_f32 v{G}, v{G}, v{G+1}")
    E(f"v_add_f32 v{G+2}, v{G+2}, v{G+3}")
    E(f"v_add_f32_dpp v{G}, v{G}, v{G} row_ror:8 row_mask:0xf bank_mask:0xf")
    E(f"v_add_f32_dpp v{G+2}, v{G+2}, v{G+2} row_ror:8 row_mask:0xf bank_mask:0xf")
    E(f"v_cndmask_b32 v{G}, v{G}, v{G+2}, s[98:99]")
    E(f"ds_write_b32 v28, v{G} offset:{XB}")
    E("s_waitcnt lgkmcnt(0)")
    E("s_barrier")
    stamp(20)
    for w in range(4):
        for h in range(2): E(f"ds_read_b128 {vr(V0+8*w+4*h)}, v29 offset:{XB+256*w+16*h}")
    E("s_waitcnt lgkmcnt(4)")
    for i in range(0,8,2): E(f"v_pk_add_f32 {vr(V0+i,2)}, {vr(V0+i,2)}, {vr(V0+8+i,2)}")
    E("s_waitcnt lgkmcnt(0)")
    for i in range(0,8,2): E(f"v_pk_add_f32 {vr(V0+16+i,2)}, {vr(V0+16+i,2)}, {vr(V0+24+i,2)}")
    for i in range(0,8,2): E(f"v_pk_add_f32 {vr(V0+i,2)}, {vr(V0+i,2)}, {vr(V0+16+i,2)}")
    for i in range(4): E(f"v_cvt_pk_bf16_f32 v{XF+i}, v{V0+2*i}, v{V0+2*i+1}")
    for e in range(8):
        E(f"s_lshl_b64 exec, s[{sM2}:{sM2+1}], {2*e}")
        E(f"v_mov_b64 {vr(D+4*e,2)}, {vr(XF,2)}")
        E(f"v_mov_b64 {vr(D+4*e+2,2)}, {vr(XF+2,2)}")
    E("s_mov_b64 exec, -1")
    for e in range(8):
        a=ACC+4*(e&1)
        E(f"v_mfma_f32_16x16x32_bf16 {vr(a)}, {vr(KR+4*e)}, {vr(D+4*e)}, {'0' if e<2 else vr(a)}")
    for i in (0,2): E(f"v_pk_add_f32 {vr(ACC+i,2)}, {vr(ACC+i,2)}, {vr(ACC+4+i,2)}")
    tagit(ACC)
    pub(ACC,23,sOPs,2)
    stamp(21)
    E("s_branch L_DONE")
    E("L_W2:")
    prio(1)
    if WPOS==3:
        E(f"buffer_load_ushort v{XFN}, v158, {sr(SX)}, s{sFin} offen")
        wt_loads()
        stamp(14)
    E(f"s_mov_b32 s{sCnt}, 0")
    E("L_POLLH:")
    tagchk([HX,HX+4],T)
    E("s_cbranch_vccz L_POLLH_DONE")
    E(f"s_add_u32 s{sCnt}, s{sCnt}, 1")
    E(f"s_cmp_gt_u32 s{sCnt}, 0x20000")
    E("s_cbranch_scc1 L_POLLH_DONE")
    hloads()
    E("s_waitcnt vmcnt(0)")
    E("s_branch L_POLLH")
    E("L_POLLH_DONE:")
    for k in (2,4):
        for i in range(8): E(f"v_add_f32_dpp v{HX+i}, v{HX+i}, v{HX+i} row_ror:{k} row_mask:0xf bank_mask:0xf")
    for i in range(4): E(f"v_cvt_pk_bf16_f32 v{T+i}, v{HX+i}, v{HX+4+i}")
    for i in range(4):
        E(f"v_lshlrev_b32 v{HX+i}, 16, v{T+i}"); E(f"v_and_b32 v{HX+4+i}, s{sHI}, v{T+i}")
        E(f"v_lshlrev_b32 v{T+4+i}, 16, v{B1R+i}"); E(f"v_and_b32 v{T+8+i}, s{sHI}, v{B1R+i}")
    for i in range(8): E(f"v_add_f32 v{HX+i}, v{HX+i}, v{T+4+i}")
    for i in range(4): E(f"v_cvt_pk_bf16_f32 v{T+i}, v{HX+i}, v{HX+4+i}")
    for i in range(4):
        E(f"v_lshlrev_b32 v{HX+i}, 16, v{T+i}"); E(f"v_and_b32 v{HX+4+i}, s{sHI}, v{T+i}")
    for i in range(8): E(f"v_cmp_gt_f32 vcc, v{HX+i}, 0") or E(f"v_cndmask_b32 v{HX+i}, 0, v{HX+i}, vcc")
    for i in range(8): E(f"v_mul_f32 v{HX+i}, v{HX+i}, v{HX+i}")
    for i in range(4): E(f"v_cvt_pk_bf16_f32 v{XF+i}, v{HX+2*i}, v{HX+2*i+1}")
    gemv_addr()
    E("s_waitcnt vmcnt(0)")
    stamp(17)
    tile_mm(WT, list(range(8)), lambda e,a: E(f"v_mfma_f32_16x16x32_bf16 {vr(D+4*e)}, {vr(a)}, {vr(XF)}, 0"))
    gemv_to_lds()
    E("v_lshrrev_b32 v28, 1, v0")
    E("v_lshlrev_b32 v28, 13, v28")
    E("v_and_b32 v29, 1, v0")
    E("v_lshl_add_u32 v28, v29, 4, v28")
    E(f"s_and_b32 s{sT}, s2, 7")
    E(f"s_lshl_b32 s{sT}, s{sT}, 10")
    E(f"s_lshl_b32 s{sT2}, s{sS}, 5")
    E(f"s_add_u32 s{sT}, s{sT}, s{sT2}")
    E(f"s_add_u32 s{sT2}, s{sT}, {hex(FPB)}")
    if TR:
        E(f"s_lshl_b32 s{sT}, s2, 12")
        E(f"s_add_u32 s{sT}, s{sT}, {hex(FPA)}")
        E(f"s_lshl_b32 s{sT3}, s2, 10")
        E(f"s_add_u32 s{sT3}, s{sT3}, {hex(FPB)}")
    else:
        E(f"s_add_u32 s{sT}, s{sT}, {hex(FPA)}")
        E(f"s_add_u32 s{sT3}, s{sT}, 0x40000")
        E(f"s_add_u32 s{sOPs}, s{sT}, 0x80000")
        E(f"s_add_u32 s{sMLs}, s{sT}, 0xc0000")
    E(f"s_mov_b32 s{sCnt}, 0")
    E(f"v_lshlrev_b32 v{XFN}, 16, v{XFN}")
    E(f"v_lshlrev_b32 v{B2F}, 16, v{B2F}")
    E("s_mov_b32 s98, 0xff00ff00"); E("s_mov_b32 s99, 0xff00ff00")
    E("s_waitcnt lgkmcnt(0)")
    stamp(19)
    E("s_barrier")
    stamp(20)
    E(f"s_cmp_eq_u32 s{sW}, 7")
    E("s_cbranch_scc1 L_FIN")
    E(f"s_cmp_lg_u32 s{sW}, 4")
    E("s_cbranch_scc1 L_DONE")
    for w in range(4): E(f"ds_read_b128 {vr(V0+4*w)}, v{vV} offset:{WP+4096+1024*w}")
    if not TR:
        E(f"s_lshl_b32 s{sT2}, s2, 10")
        E(f"s_add_u32 s{sT2}, s{sT2}, {hex(FPB)}")
    E("s_waitcnt lgkmcnt(0)")
    for st in (8,4):
        for i in range(0,st,2): E(f"v_pk_add_f32 {vr(V0+i,2)}, {vr(V0+i,2)}, {vr(V0+st+i,2)}")
    tagit(V0)
    pub(V0,28 if TR else vV,sT2,2)
    stamp(21)
    E("s_branch L_DONE")
    E("L_FIN:")
    E("L_POLL2:")
    if TR:
        for i in range(4): E(f"buffer_load_dwordx4 {vr(V0+4*i)}, v{vV}, {sr(SWS)}, s{sT} offen offset:{1024*i} sc1")
        E(f"buffer_load_dwordx4 {vr(V0+16)}, v{vV}, {sr(SWS)}, s{sT3} offen sc1")
    else:
        for i,so in enumerate((sT,sT3,sOPs,sMLs,sT2)):
            E(f"buffer_load_dwordx4 {vr(V0+4*i)}, v28, {sr(SWS)}, s{so} offen sc1")
    if MASK: E("s_mov_b64 exec, -1")
    E(f"s_add_u32 s{sCnt}, s{sCnt}, 1")
    E("s_waitcnt vmcnt(0)")
    tagchk([V0+4*i for i in range(5)],T)
    E(f"s_cmp_gt_u32 s{sCnt}, 0x40000")
    E("s_cbranch_scc1 L_POLL2_DONE")
    if MASK:
        E("s_cbranch_vccz L_POLL2_DONE")
        E("s_mov_b64 exec, vcc")
        E("s_branch L_POLL2")
    else:
        E("s_cbranch_vccnz L_POLL2")
    E("L_POLL2_DONE:")
    stamp(21)
    for i in (0,2): E(f"v_pk_add_f32 {vr(V0+i,2)}, {vr(V0+i,2)}, {vr(V0+4+i,2)}")
    for i in (0,2): E(f"v_pk_add_f32 {vr(V0+8+i,2)}, {vr(V0+8+i,2)}, {vr(V0+12+i,2)}")
    for i in (0,2): E(f"v_pk_add_f32 {vr(V0+i,2)}, {vr(V0+i,2)}, {vr(V0+8+i,2)}")
    for r in range(4): E(f"v_permlane32_swap_b32 v{V0+r}, v{V0+16+r}")
    for i in (0,2): E(f"v_pk_add_f32 {vr(V0+i,2)}, {vr(V0+i,2)}, {vr(V0+16+i,2)}")
    E(f"v_permlane16_swap_b32 v{V0}, v{V0+1}")
    E(f"v_permlane16_swap_b32 v{V0+2}, v{V0+3}")
    E(f"v_add_f32 v{V0}, v{V0}, v{V0+1}")
    E(f"v_add_f32 v{V0+2}, v{V0+2}, v{V0+3}")
    for k in (2,4,8):
        for i in (0,2): E(f"v_add_f32_dpp v{V0+i}, v{V0+i}, v{V0+i} row_ror:{k} row_mask:0xf bank_mask:0xf")
    E(f"v_cndmask_b32 v{V0}, v{V0}, v{V0+2}, s[98:99]")
    E(f"v_mov_b32 v{V0+1}, v{V0}")
    E(f"v_permlane32_swap_b32 v{V0}, v{V0+1}")
    E(f"v_cvt_pk_bf16_f32 v{V0+2}, v{V0}, v{V0+1}")
    E(f"v_lshlrev_b32 v{V0}, 16, v{V0+2}")
    E(f"v_and_b32 v{V0+1}, s{sHI}, v{V0+2}")
    E(f"v_add_f32 v{V0}, v{XFN}, v{V0}")
    E(f"v_add_f32 v{V0+1}, v{V0+1}, v{B2F}")
    E(f"v_cvt_pk_bf16_f32 v{V0+2}, v{V0}, v{V0+1}")
    E(f"v_lshlrev_b32 v{V0}, 16, v{V0+2}")
    E(f"v_and_b32 v{V0+1}, s{sHI}, v{V0+2}")
    E(f"v_add_f32 v{V0}, v{V0}, v{V0+1}")
    E(f"v_cvt_pk_bf16_f32 v{V0}, v{V0}, v{V0}")
    E("s_mov_b64 exec, 0x03030303")
    E(f"buffer_store_short v{V0}, v158, {sr(SO)}, s{sFin} offen")
    E("s_cmp_lg_u32 s2, 0")
    E("s_cbranch_scc1 L_DONE")
    E("s_mov_b64 exec, 1")
    E(f"v_mov_b32 v28, s{sEp}")
    E(f"s_mov_b32 s{sT}, {hex(EP)}")
    E(f"buffer_store_dword v28, off, {sr(SWS)}, s{sT} sc1")
    E("L_DONE:")
    if DIAG:
        E("s_mov_b64 exec, -1")
        E("s_waitcnt vmcnt(0)")
        stamp(22)
        E("s_getreg_b32 s96, hwreg(HW_REG_HW_ID)")
        E("v_writelane_b32 v31, s96, 24")
        E("s_getreg_b32 s96, hwreg(HW_REG_XCC_ID)")
        E("v_writelane_b32 v31, s96, 25")
        E(f"s_lshl_b32 s{sT}, s2, 3")
        E(f"s_add_u32 s{sT}, s{sT}, s{sW}")
        E(f"s_lshl_b32 s{sT}, s{sT}, 8")
        E(f"s_add_u32 s{sT}, s{sT}, {hex(DG)}")
        E("v_lshlrev_b32 v28, 2, v0")
        E(f"buffer_store_dword v31, v28, {sr(SWS)}, s{sT} offen")
    E("L_END:")
    L=[x for x in L if x]
    body=hazard_pass(L)
    ref=open(f"cdna_kernels/{NAME}.s.ref").read().split("\n")
    hdr=[l for l in ref if l.startswith(";") and "@launch" not in l]
    out=hdr+[f"; @launch grid=(256,1,1) block=(512,1,1) lds={LDS}",
      '.amdgcn_target "amdgcn-amd-amdhsa--gfx950"',".text",f".globl {NAME}_kernel",".p2align 8",
      f".type {NAME}_kernel,@function",f"{NAME}_kernel:"]+body+["s_endpgm",'.section .rodata,"a"',".p2align 6",
      f".amdhsa_kernel {NAME}_kernel","  .amdhsa_next_free_vgpr 256","  .amdhsa_next_free_sgpr 102",
      "  .amdhsa_accum_offset 256","  .amdhsa_group_segment_fixed_size 0","  .amdhsa_kernarg_size 104",
      "  .amdhsa_user_sgpr_count 2","  .amdhsa_user_sgpr_kernarg_segment_ptr 1",
      "  .amdhsa_system_sgpr_workgroup_id_x 1",".end_amdhsa_kernel",""]
    return "\n".join(out)

if __name__=="__main__":
    opt={}
    outp=f"cdna_kernels/{NAME}.s"
    for a in sys.argv[1:]:
        k,v=a.split("=",1)
        if k=="out": outp=v
        else:
            try: opt[k]=int(v,0)
            except: opt[k]=v
    open(outp,"w").write(gen(opt))
```
